```python
import torch

def _softmax(x, axis=-1):
    return torch.softmax(x, dim=axis)

def _gelu(x):
    return torch.nn.functional.gelu(x, approximate='tanh')

def _silu(x):
    return torch.nn.functional.silu(x)

def _sigmoid(x):
    return torch.sigmoid(x)

def _layernorm(x, axis=-1, eps=1e-05):
    m = x.mean(dim=axis, keepdim=True)
    v = x.var(dim=axis, keepdim=True, unbiased=False)
    return (x - m) / torch.sqrt(v + eps)

def _scatter_add(tgt, idx, src, axis=0):
    return tgt.clone().index_add_(axis, idx, src)

def _segment_sum(src, seg, n):
    out = torch.zeros((n,) + src.shape[1:], dtype=src.dtype)
    return out.index_add_(0, seg, src)

def _pad(x, pw):
    flat = tuple((v for pair in reversed(pw) for v in pair))
    return torch.nn.functional.pad(x, flat)
kernel_name = 'adaLN_cond__gqa_block_cached__geglu_ffn__decode'

def setup_inputs():

    _w = lambda a: (lambda t: t.to(torch.bfloat16) if t.is_floating_point() else t)(torch.as_tensor(a))

    def _A_setup():
        B, Sq, D = (4, 1, 1024)
        Hq, Hkv, Sk, Dh = (32, 4, 16384, 128)
        assert Hq % Hkv == 0, (Hq, Hkv)
        return {'x': _w((lambda *s: torch.randn(*s, dtype=torch.bfloat16) * 0.1)(B, Sq, D)), 'k_cache': _w((lambda *s: torch.randn(*s, dtype=torch.bfloat16) * 0.8)(B, Hkv, Sk, Dh)), 'v_cache': _w((lambda *s: torch.randn(*s, dtype=torch.bfloat16) * 0.8)(B, Hkv, Sk, Dh)), 'wq': _w((lambda *s: torch.randn(*s, dtype=torch.bfloat16) * 0.8)(D, Hq * Dh) * D ** (-0.5)), 'wo': _w((lambda *s: torch.randn(*s, dtype=torch.bfloat16) * 0.8)(Hq * Dh, D) * (Hq * Dh) ** (-0.5))}
    _A_in = _A_setup()

    def _B_setup():
        B, S, D, F = (4, 1, 1024, 3584)
        return {'x': _w((lambda *s: torch.randn(*s, dtype=torch.bfloat16) * 0.1)(B, S, D)), 'w_gate': _w((lambda *s: torch.randn(*s, dtype=torch.bfloat16) * 0.1)(D, F)), 'w_up': _w((lambda *s: torch.randn(*s, dtype=torch.bfloat16) * 0.1)(D, F)), 'w_down': _w((lambda *s: torch.randn(*s, dtype=torch.bfloat16) * 0.1)(F, D))}
    _B_in = _B_setup()
    return {'A_x': _A_in['x'], 'A_k_cache': _A_in['k_cache'], 'A_v_cache': _A_in['v_cache'], 'A_wq': _A_in['wq'], 'A_wo': _A_in['wo'], 'B_x': _B_in['x'], 'B_w_gate': _B_in['w_gate'], 'B_w_up': _B_in['w_up'], 'B_w_down': _B_in['w_down'], 'c': _w((lambda *s: torch.randn(*s, dtype=torch.bfloat16) * 0.4)(4, 1024) * 8.0), 'w_mod': _w((lambda *s: torch.randn(*s, dtype=torch.bfloat16) * 0.4)(1024, 6 * 1024) * 1024 ** (-0.5) * 8.0)}

def reference(A_x, A_k_cache, A_v_cache, A_wq, A_wo, B_x, B_w_gate, B_w_up, B_w_down, c, w_mod):

    def _A_ref(x, k_cache, v_cache, wq, wo):
        B, Sq, D = x.shape
        Hq, Dh = (32, 128)
        Hkv = k_cache.shape[1]
        rep = Hq // Hkv
        q = (lambda x, *d: x.permute(*d))((x @ wq).reshape(B, Sq, Hq, Dh), 0, 2, 1, 3)
        k = (lambda x, n, axis: torch.repeat_interleave(x, n, dim=axis))(k_cache, rep, axis=1)
        v = (lambda x, n, axis: torch.repeat_interleave(x, n, dim=axis))(v_cache, rep, axis=1)
        scores = torch.einsum('bhqd,bhkd->bhqk', q, k) * Dh ** (-0.5)
        p = _softmax(scores, axis=-1)
        o = torch.einsum('bhqk,bhkd->bhqd', p, v)
        return (lambda x, *d: x.permute(*d))(o, 0, 2, 1, 3).reshape(B, Sq, Hq * Dh) @ wo

    def _B_ref(x, w_gate, w_up, w_down):
        return _gelu(x @ w_gate) * (x @ w_up) @ w_down
    x = A_x
    mod = (_silu(c) @ w_mod).reshape(c.shape[0], 6, 1, -1)
    sa, ca, ga, sb, cb, gb = (mod[:, 0].clone(), mod[:, 1].clone(), mod[:, 2].clone(), mod[:, 3].clone(), mod[:, 4].clone(), mod[:, 5].clone())
    h = _layernorm(x, axis=-1) * (1 + ca) + sa
    x = x + ga * _A_ref(h, A_k_cache, A_v_cache, A_wq, A_wo)
    h = _layernorm(x, axis=-1) * (1 + cb) + sb
    x = x + gb * _B_ref(h, B_w_gate, B_w_up, B_w_down)
    return x
```

```python
import re

TRANS = ('v_exp_f32', 'v_log_f32', 'v_rcp_f32', 'v_rsq_f32', 'v_sqrt_f32', 'v_sin_f32', 'v_cos_f32')


def regs_of(op):
    op = op.strip()
    op = op.lstrip('-')
    m = re.fullmatch(r'abs\((.*)\)', op) or re.fullmatch(r'\|(.*)\|', op)
    if m:
        op = m.group(1)
    m = re.fullmatch(r'([vsa])(\d+)', op)
    if m:
        return {(m.group(1), int(m.group(2)))}
    m = re.fullmatch(r'([vsa])\[(\d+):(\d+)\]', op)
    if m:
        return {(m.group(1), i) for i in range(int(m.group(2)), int(m.group(3)) + 1)}
    if op in ('vcc', 'vcc_lo', 'vcc_hi'):
        return {('x', 'vcc')}
    if op in ('exec', 'exec_lo', 'exec_hi'):
        return {('x', 'exec')}
    if op == 'm0':
        return {('x', 'm0')}
    return set()


class Ins:
    def __init__(self, text):
        self.text = text
        t = text.split(';')[0].strip()
        self.label = None
        self.mn = None
        if not t or t.startswith('.'):
            return
        if t.endswith(':'):
            self.label = t[:-1]
            return
        parts = t.split(None, 1)
        self.mn = mn = parts[0]
        rest = parts[1] if len(parts) > 1 else ''
        ops = []
        depth = 0
        cur = ''
        for ch in rest:
            if ch in '[(':
                depth += 1
            if ch in '])':
                depth -= 1
            if ch == ',' and depth == 0:
                ops.append(cur.strip())
                cur = ''
            else:
                cur += ch
        if cur.strip():
            ops.append(cur.strip())
        mods = ''
        if ops:
            last = ops[-1].split(None, 1)
            ops[-1] = last[0]
            mods = last[1] if len(last) > 1 else ''
        self.ops = ops
        self.mods = mods
        base = re.sub(r'_(e32|e64|dpp|sdwa)$', '', mn)
        self.base = base
        self.is_mfma = base.startswith('v_mfma')
        self.is_valu = base.startswith('v_') and not self.is_mfma
        self.is_salu = base.startswith('s_')
        self.is_vmem = base.startswith(('buffer_', 'global_'))
        self.is_ds = base.startswith('ds_')
        self.is_trans = base in TRANS
        self.is_dpp = mn.endswith('_dpp') or 'row_' in mods or 'quad_perm' in mods
        self.is_perm = base.startswith('v_permlane')
        self.is_rdlane = base in ('v_readfirstlane_b32', 'v_readlane_b32')
        self.is_dot = base.startswith('v_dot')
        self.is_ldsdma = self.is_vmem and (' lds' in ' ' + mods or '_lds_' in base)
        self.branch = None
        R = [regs_of(o) for o in ops]
        w = set()
        r = set()
        self.srcC = set()
        self.srcAB = set()
        self.stdata = set()
        if self.is_mfma:
            w = R[0]
            self.srcAB = R[1] | R[2]
            self.srcC = R[3]
            r = self.srcAB | self.srcC
        elif self.is_valu:
            if base == 'v_nop':
                pass
            elif self.is_perm:
                w = R[0] | R[1]
                r = R[0] | R[1]
            elif base in ('v_add_co_u32', 'v_sub_co_u32', 'v_addc_co_u32', 'v_subb_co_u32', 'v_div_scale_f32'):
                w = R[0] | R[1]
                for x in R[2:]:
                    r |= x
            else:
                w = R[0]
                for x in R[1:]:
                    r |= x
                if base.startswith(('v_fmac', 'v_dot2c', 'v_writelane')) or self.is_dpp:
                    r |= R[0]
                if base.startswith('v_dot2_'):
                    self.srcC = R[3]
                    self.srcAB = R[1] | R[2]
                if base.startswith('v_dot2c'):
                    self.srcC = R[0]
                    self.srcAB = R[1] | R[2]
        elif self.is_ds:
            if base.startswith(('ds_read', 'ds_swizzle', 'ds_bpermute', 'ds_permute')) or '_rtn_' in base:
                w = R[0]
                for x in R[1:]:
                    r |= x
            else:
                for x in R:
                    r |= x
        elif self.is_vmem:
            if 'load' in base and not self.is_ldsdma:
                w = R[0]
                for x in R[1:]:
                    r |= x
                if 'd16' in base:
                    r |= R[0]
            else:
                for x in R:
                    r |= x
                if base.startswith('buffer_store') and base.endswith(('x3', 'x4')):
                    self.stdata = R[0]
                if base.startswith('global_store') and base.endswith(('x3', 'x4')):
                    self.stdata = R[1]
                if 'atomic' in base and 'sc0' in mods:
                    w = R[0]
            if self.is_ldsdma:
                r |= {('x', 'm0')}
        elif self.is_salu:
            if base.startswith(('s_cbranch', 's_branch')):
                self.branch = ops[0]
            elif base == 's_call_b64':
                self.branch = ops[1]
                w = R[0]
            elif base.startswith(('s_cmp', 's_waitcnt', 's_nop', 's_sleep', 's_setprio', 's_barrier', 's_endpgm', 's_setpc', 's_bitcmp')):
                for x in R:
                    r |= x
            else:
                if R:
                    w = R[0]
                for x in R[1:]:
                    r |= x
                if 'saveexec' in base:
                    w |= {('x', 'exec')}
        self.w = w
        self.r = r

    def states(self):
        if self.mn is None:
            return 0
        if self.mn == 's_nop':
            return int(self.ops[0], 0) + 1
        return 1


def vg(s):
    return {x for x in s if x[0] in 'va'}


def sg(s):
    return {x for x in s if x[0] == 's' or x == ('x', 'vcc')}


def need(p, c):
    n = 0
    if p.mn is None or c.mn is None:
        return 0
    if p.is_valu:
        pv = vg(p.w)
        if c.is_mfma and pv & c.r:
            n = max(n, 2)
        if p.is_trans and c.is_valu and (pv & c.r):
            n = max(n, 1)
        if c.is_valu and (c.is_dpp or c.is_perm) and (pv & c.r):
            n = max(n, 2)
        if c.is_rdlane and (pv & c.r):
            n = max(n, 1)
        ps = sg(p.w)
        if ps:
            if c.is_valu and (ps & c.r):
                n = max(n, 4 if c.base in ('v_readlane_b32', 'v_writelane_b32') else 2)
            if c.is_vmem and (ps & c.r):
                n = max(n, 5)
            if c.is_salu and (ps & c.r):
                n = max(n, 1)
        if p.is_dot and (c.is_valu or c.is_mfma or c.is_vmem or c.is_ds):
            if c.base == p.base:
                if pv & c.srcAB:
                    n = max(n, 3)
            elif pv & (c.r | c.w):
                n = max(n, 3)
        if ('sdwa' in p.mn or 'op_sel' in p.mods) and c.is_valu and (pv & (c.r | c.w)):
            n = max(n, 1)
    if p.is_mfma:
        big = '32x32' in p.base
        if c.is_mfma:
            if p.w & c.srcAB:
                n = max(n, 12 if big else 8)
            if (p.w & c.srcC) and p.w != c.srcC:
                n = max(n, 10 if big else 6)
            if (p.w & c.w) and not (p.w & c.srcC):
                n = max(n, 12 if big else 8)
        elif c.is_valu or c.is_vmem or c.is_ds:
            if p.w & (c.r | c.w):
                n = max(n, 12 if big else 8)
            if c.is_valu and (p.srcC & c.w):
                n = max(n, 7 if big else 3)
    if p.is_salu and ('x', 'm0') in p.w and c.is_ldsdma:
        n = max(n, 1)
    if p.stdata and (p.stdata & c.w):
        n = max(n, 2)
    return n


WINDOW = 14


def required(hist, c):
    dist = 0
    add = 0
    for p in reversed(hist):
        if p.mn is None:
            continue
        n = need(p, c)
        if n > dist:
            add = max(add, n - dist)
        dist += p.states()
        if dist >= WINDOW:
            break
    return add


class Asm:
    def __init__(self):
        self.lines = []
        self.uid = 0

    def __call__(self, s):
        for ln in s.split('\n'):
            ln = ln.strip()
            if ln:
                self.lines.append(ln)

    def label(self, name):
        self.lines.append(name + ':')

    def new(self, p='L'):
        self.uid += 1
        return f'{p}_{self.uid}'

    def sizes(self, ins):
        import subprocess, tempfile, os
        d = tempfile.mkdtemp()
        labels = {c.label for c in ins if c.label}
        missing = {c.branch for c in ins if c.mn and c.branch and c.branch not in labels}
        src = '.amdgcn_target "amdgcn-amd-amdhsa--gfx950"\n.text\nk:\n' + '\n'.join(c.text for c in ins if not c.text.startswith(';')) + '\n' + ''.join(m + ':\n' for m in missing)
        open(d + '/a.s', 'w').write(src)
        subprocess.check_call(['clang', '-x', 'assembler', '-target', 'amdgcn-amd-amdhsa', '-mcpu=gfx950', '-c', d + '/a.s', '-o', d + '/a.o'])
        o = subprocess.check_output(['llvm-objdump', '-d', '--mcpu=gfx950', d + '/a.o'], text=True)
        sz = []
        for ln in o.split('\n'):
            m = re.search(r'//\s*[0-9A-F]{12}:((?: [0-9A-F]{8})+)', ln)
            if m:
                sz.append(4 * len(m.group(1).split()))
        n = sum(1 for c in ins if c.mn)
        assert len(sz) == n, (len(sz), n)
        return sz

    def add_pads(self, ins, nw, step):
        sz = iter(self.sizes(ins))
        addr = 0
        out = []
        region = None
        pads = {}
        last = None
        hold = False
        for c in ins:
            t = c.text
            if t.startswith(';warm_begin'):
                region = t.split()[1]
                pads.setdefault(region, [])
                last = None
                continue
            if t.startswith(';warm_end'):
                region = None
                continue
            if t.startswith(';nopad'):
                hold = t.split()[1] == '1'
                continue
            if c.mn:
                n = next(sz)
                if region and not hold and (last is None or addr // step != last):
                    last = addr // step
                    p = Ins('s_cbranch_execz PAD')
                    lab = Ins('PADL:')
                    pads[region].append((lab, p))
                    out += [lab, p]
                    addr += 4
                addr += n
            out.append(c)
        res = {}
        for r, ps in pads.items():
            n = len(ps)
            starts = [n * w // nw for w in range(nw)]
            for i, (lab, p) in enumerate(ps):
                names = [f'{r}_e{w}' for w in range(nw) if starts[w] == i]
                lab.__init__(f'{r}_p{i}:')
                res[id(lab)] = names
                nxt = f'{r}_ret' if (i + 1 == n or (i + 1) in starts) else f'{r}_p{i + 1}'
                p.__init__(f's_cbranch_execz {nxt}')
                p.pad = True
        fin = []
        for c in out:
            for nm in res.get(id(c), []):
                fin.append(Ins(nm + ':'))
            fin.append(c)
        self.code_bytes = addr
        self.npads = {r: len(p) for r, p in pads.items()}
        return fin

    def finish(self, nw=8, step=64):
        out = []
        for ln in self.lines:
            c = Ins(ln)
            if c.mn is not None:
                add = required(out[-40:], c)
                while add > 0:
                    k = min(add, 16)
                    out.append(Ins(f's_nop {k - 1}'))
                    add -= k
            out.append(c)
        out = self.add_pads(out, nw, step)
        pos = {c.label: i for i, c in enumerate(out) if c.label}
        for i, c in enumerate(out):
            if c.mn and c.branch and c.branch in pos and not getattr(c, 'pad', False):
                hist = out[max(0, i - 40):i + 1]
                t = pos[c.branch]
                seen = 0
                h = list(hist)
                for d in out[t:t + 60]:
                    if d.mn is None:
                        continue
                    a = required(h, d)
                    if a:
                        raise RuntimeError(f'hazard across branch "{c.text}" -> "{d.text}" needs {a}')
                    h.append(d)
                    seen += d.states()
                    if seen >= WINDOW or d.base in ('s_branch', 's_endpgm', 's_setpc_b64'):
                        break
        txt = []
        for c in out:
            if c.label or c.text.startswith('.'):
                txt.append(c.text)
            else:
                txt.append('    ' + c.text)
        return '\n'.join(txt) + '\n'
```

```python
import sys, struct, argparse
from asmlib import Asm

NAME = 'adaLN_cond__gqa_block_cached__geglu_ffn__decode'


def f32(x):
    return '0x%08x' % struct.unpack('<I', struct.pack('<f', x))[0]


LOG2E = 1.4426950408889634

MODP = 0
QP = MODP + 4 * 384 * 256
ML = QP + 8 * 256 * 256
OP = ML + 16384
DP = OP + 32 * 64 * 256
X1 = DP + 64 * 32 * 256
EP = X1 + 8192
FP = EP + 56 * 4 * 8 * 256
WS_END = FP + 64 * 56 * 256
STAMPS = 8 << 20

LANDED = 0
FREED = 256
FLAG = 320
ST1 = 384
ST2 = 512
MX = 768
LS = 1024
ACT_A = 2048
ACT_B = 4096
ACT_D = 5120
ACT_E = 6144
ACT_F = 8192
QB = 9216
PB = 16384
RING0 = 32768
LDS_BYTES = 163840

N_A, N_Q, N_K, N_V, N_O, N_G, N_U, N_F, N_END = 0, 8, 12, 44, 76, 80, 84, 88, 92


def slot(n):
    return RING0 + (n & 15) * 8192


def build(cfg):
    a = Asm()
    DBG = cfg.debug
    W_MAIN, W_TAIL = cfg.wmain, cfg.wtail

    pX, pK, pV, pWQ, pWO, pG, pU, pD, pC, pWM, pOUT, pDBG, pWS = 16, 18, 20, 22, 24, 28, 30, 32, 34, 36, 38, 40, 42
    sp = lambda p: f's[{p}:{p + 1}]'
    sW, sTO = 's3', 's48'
    sXcd, sJ = 's4', 's5'
    T0, T1, T2, T3 = 's49', 's50', 's51', 's52'
    stamp_n = [0]
    stamp_names = []

    def stamp(name):
        if not DBG:
            return
        i = stamp_n[0]
        stamp_n[0] += 1
        stamp_names.append(name)
        assert i < 32
        a(f's_memrealtime s[62:63]\ns_waitcnt lgkmcnt(0)\ns_mov_b32 s{64 + i}, s62')

    def dump_stamps(row):
        if not DBG:
            return
        a('s_mov_b64 exec, -1')
        for i in range(32):
            a(f'v_writelane_b32 v8, s{64 + i}, {i}')
        a(f'''s_lshl_b32 {T0}, {row}, 7
            s_add_u32 {T0}, {T0}, {STAMPS}
            v_lshlrev_b32 v9, 2, v0
            v_add_u32 v9, {T0}, v9
            s_mov_b32 exec_hi, 0
            global_store_dword v9, v8, {sp(pWS)}''')

    def timeout():
        a(f's_sub_u32 {sTO}, {sTO}, 1\ns_cbranch_scc1 L_abort')

    if DBG:
        a('s_memrealtime s[96:97]')
    a(f'''s_cmp_ge_u32 s2, 256
        s_cbranch_scc1 L_end
        s_load_dwordx16 s[16:31], s[0:1], 0
        s_load_dwordx8 s[32:39], s[0:1], 64
        s_load_dwordx4 s[40:43], s[0:1], 96
        v_lshrrev_b32 v1, 6, v0
        v_and_b32 v0, 63, v0
        v_readfirstlane_b32 {sW}, v1
        s_and_b32 {sXcd}, s2, 7
        s_lshr_b32 {sJ}, s2, 3
        s_mov_b32 {sTO}, {cfg.timeout}
        s_cmp_lg_u32 {sW}, 0
        s_cbranch_scc1 L_consumer''')

    sOff, sStep, sJump, sEnd, sN, sLds, sPub = 's12', 's13', 's14', 's15', 's44', 's45', 's53'
    vO0, vO1, vF, vFa, vL4, vR, vC0, vC1, vT = 'v1', 'v2', 'v3', 'v4', 'v5', 'v6', 'v7', 'v10', 'v11'
    if DBG:
        for i in range(32):
            a(f's_mov_b32 s{64 + i}, 0')
    a(f'''s_setprio 3
        v_lshlrev_b32 {vL4}, 2, v0
        v_mov_b32 {vF}, 0
        ds_write_b32 {vL4}, {vF} offset:{LANDED}
        ds_write_b32 {vL4}, {vF} offset:{FREED}
        v_and_b32 {vFa}, 28, {vL4}
        v_lshrrev_b32 {vR}, 4, v0
        v_and_b32 {vC0}, 15, v0
        v_lshlrev_b32 {vT}, 1, {vR}
        v_xor_b32 {vC0}, {vC0}, {vT}
        v_lshlrev_b32 {vC0}, 4, {vC0}
        v_xor_b32 {vC1}, 0x80, {vC0}
        s_mov_b32 s11, 0x20000
        s_mov_b32 {sPub}, 0''')

    def seg(ptr, nbytes, pitch, n0=None, jump=None, fold=False):
        a(f'''s_mov_b32 s8, s{ptr}
            s_mov_b32 s9, s{ptr + 1}
            s_mov_b32 s10, {nbytes}
            s_mov_b32 {sStep}, {4 * pitch}
            s_mov_b32 {sJump}, {jump if jump is not None else 4 * pitch}''')
        if pitch is not None:
            a(f'v_mul_u32_u24 {vT}, {pitch}, {vR}')
            if not fold:
                a(f'v_add_u32 {vO0}, {vT}, {vC0}\nv_add_u32 {vO1}, {vT}, {vC1}')
            else:
                for vO, vC in ((vO0, vC0), (vO1, vC1)):
                    a(f'''v_and_b32 v12, 0x80, {vC}
                        v_mul_u32_u24 v12, {pitch}, v12
                        v_and_b32 v13, 0x70, {vC}
                        v_add3_u32 {vO}, {vT}, v12, v13''')

    def run(end, which):
        a(f's_mov_b32 {sEnd}, {end}\ns_call_b64 s[46:47], L_loop{which}')

    a(f's_cmp_ge_u32 s2, 192\ns_cbranch_scc1 L_ld_noA')
    a(f'''s_and_b32 {T0}, s2, 3
        s_mul_i32 {T0}, {T0}, {256 * 12288}
        s_lshr_b32 {T1}, s2, 2
        s_lshl_b32 {T1}, {T1}, 8
        s_add_u32 {sOff}, {T0}, {T1}
        s_mov_b32 {sN}, {N_A}
        s_waitcnt lgkmcnt(0)''')
    stamp('ld_args')
    seg(pWM, 1024 * 12288, 12288)
    run(N_A + 2, 'M')
    a('s_waitcnt lgkmcnt(0)\ns_barrier')
    run(N_Q, 'M')
    a(f'''s_lshl_b32 {T0}, {sXcd}, 20
        s_lshl_b32 {T1}, {sJ}, 8
        s_add_u32 {sOff}, {T0}, {T1}''')
    seg(pWQ, 1024 * 8192, 8192)
    a('s_branch L_ld_q')
    a.label('L_ld_noA')
    a(f'''s_lshl_b32 {T0}, {sXcd}, 20
        s_lshl_b32 {T1}, {sJ}, 8
        s_add_u32 {sOff}, {T0}, {T1}
        s_mov_b32 {sN}, {N_Q}
        s_waitcnt lgkmcnt(0)''')
    seg(pWQ, 1024 * 8192, 8192)
    run(N_Q + 2, 'M')
    a('s_waitcnt lgkmcnt(0)\ns_barrier')
    a.label('L_ld_q')
    run(N_K, 'M')
    stamp('ld_q_issued')
    a(f'''s_lshr_b32 {T0}, {sJ}, 4
        s_lshl_b32 {T1}, {sXcd}, 1
        s_add_u32 {T0}, {T0}, {T1}
        s_and_b32 {T1}, {T0}, 3
        s_lshl_b32 {T1}, {T1}, 2
        s_lshr_b32 {T0}, {T0}, 2
        s_add_u32 {T0}, {T0}, {T1}
        s_lshl_b32 {T0}, {T0}, 22
        s_and_b32 {T1}, {sJ}, 15
        s_lshl_b32 {T1}, {T1}, 18
        s_add_u32 s54, {T0}, {T1}
        s_mov_b32 {sOff}, s54''')
    seg(pK, 1 << 26, 256)
    run(N_V, 'M')
    stamp('ld_k_issued')
    a(f's_mov_b32 {sOff}, s54\ns_mov_b32 s8, s{pV}\ns_mov_b32 s9, s{pV + 1}')
    run(N_O, 'M')
    stamp('ld_v_issued')
    a(f'''s_lshl_b32 {T0}, {sXcd}, 2
        s_lshr_b32 {T1}, {sJ}, 3
        s_add_u32 {T0}, {T0}, {T1}
        s_lshr_b32 {T1}, {T0}, 3
        s_lshl_b32 {T1}, {T1}, 21
        s_and_b32 {T0}, {T0}, 7
        s_lshl_b32 {T0}, {T0}, 15
        s_add_u32 {T0}, {T0}, {T1}
        s_and_b32 {T1}, {sJ}, 7
        s_lshl_b32 {T1}, {T1}, 8
        s_add_u32 {sOff}, {T0}, {T1}''')
    seg(pWO, 4096 * 2048, 2048, jump=(128 - 12) * 2048)
    run(N_G, 'T')
    stamp('ld_o_issued')
    a('s_cmp_lt_u32 s2, 32\ns_cbranch_scc1 L_ld_drain')
    a(f'''s_sub_u32 {T0}, {sJ}, 4
        s_and_b32 s55, {T0}, 3
        s_lshr_b32 {T0}, {T0}, 2
        s_lshl_b32 {T0}, {T0}, 3
        s_add_u32 s56, {T0}, {sXcd}
        s_mul_i32 {T0}, s55, {256 * 7168}
        s_lshl_b32 {T1}, s56, 7
        s_add_u32 s54, {T0}, {T1}
        s_mov_b32 {sOff}, s54''')
    seg(pG, 1024 * 7168, 7168, fold=True)
    run(N_U, 'T')
    a(f's_mov_b32 {sOff}, s54\ns_mov_b32 s8, s{pU}\ns_mov_b32 s9, s{pU + 1}')
    run(N_F, 'T')
    stamp('ld_u_issued')
    a(f'''s_lshl_b32 {T0}, s56, 17
        s_lshl_b32 {T1}, s55, 9
        s_add_u32 s54, {T0}, {T1}
        s_mov_b32 {sOff}, s54''')
    seg(pD, 3584 * 2048, 2048)
    run(N_F + 2, 'T')
    a(f's_add_u32 {sOff}, s54, 256')
    run(N_END, 'T')
    a.label('L_ld_drain')
    for k in (2, 1, 0):
        if 8 * k <= W_TAIL - 2:
            a(f'''s_sub_u32 {T0}, {sN}, {k}
                v_mov_b32 {vT}, {T0}
                s_waitcnt vmcnt({8 * k})
                ds_write_b32 {vL4}, {vT} offset:{LANDED}''')
    stamp('ld_done')
    if DBG:
        a(f's_lshl_b32 {T1}, s2, 1\ns_add_u32 {T1}, {T1}, 1')
        a(f'''s_lshl_b32 {T0}, s2, 9
            s_add_u32 {T0}, {T0}, {STAMPS + (1 << 20)}
            v_add_u32 v9, {T0}, {vL4}
            global_store_dword v9, v20, {sp(pWS)}
            global_store_dword v9, v21, {sp(pWS)} offset:256''')
        dump_stamps(T1)
    loader_names = list(stamp_names)
    a('s_endpgm')

    def loader_loop(which, W):
        assert W % 2 == 0
        a.label(f'L_loop{which}')
        a(f'''s_waitcnt lgkmcnt(0)
            s_sub_i32 {T0}, {sN}, 16
            v_cmp_ge_i32 vcc, {T0}, {vF}
            s_and_b32 {sLds}, {sN}, 15
            s_lshl_b32 {sLds}, {sLds}, 13
            s_cbranch_vccnz L_stall{which}''')
        a.label(f'L_go{which}')
        if DBG and cfg.trace:
            a(f'''s_memrealtime s[62:63]
                s_mov_b32 m0, {sN}
                s_waitcnt lgkmcnt(0)
                s_cmp_ge_u32 {sN}, 64
                s_cbranch_scc1 L_tr{which}
                v_writelane_b32 v20, s62, m0''')
            a.label(f'L_tr{which}')
            a('v_writelane_b32 v21, s62, m0')
        for o in range(8):
            a(f's_add_u32 m0, {sLds}, {RING0 + o * 1024}')
            if o == 0:
                a(f'ds_read_b32 {vF}, {vFa} offset:{FREED}')
            else:
                a(f's_add_u32 {sOff}, {sOff}, {sJump if o == 4 else sStep}')
            a(f'buffer_load_dwordx4 {vO1 if o & 1 else vO0}, s[8:11], {sOff} offen nt lds')
            if o & 1:
                pub = (o + 3 - W) % 8 == 0
                if pub:
                    a(f'''s_add_i32 {T0}, {sN}, {(o + 3 - W) // 8}
                        s_max_i32 {sPub}, {sPub}, {T0}
                        v_mov_b32 {vT}, {sPub}''')
                a(f's_waitcnt vmcnt({W - 2})')
                if pub:
                    a(f'ds_write_b32 {vL4}, {vT} offset:{LANDED}')
        a(f'''s_add_u32 {sOff}, {sOff}, {sJump}
            s_add_u32 {sN}, {sN}, 1
            s_cmp_lt_u32 {sN}, {sEnd}
            s_cbranch_scc1 L_loop{which}
            s_setpc_b64 s[46:47]''')
        a.label(f'L_stall{which}')
        a(f'ds_read_b32 {vF}, {vFa} offset:{FREED}')
        timeout()
        a(f'''s_waitcnt lgkmcnt(0)
            v_cmp_ge_i32 vcc, {T0}, {vF}
            s_cbranch_vccnz L_stall{which}
            s_branch L_go{which}''')

    loader_loop('M', W_MAIN)
    loader_loop('T', W_TAIL)

    stamp_n[0] = 0
    stamp_names.clear()
    vL4, vTr, vAct, vPub, vFl, vW4, vP = 'v1', 'v2', 'v3', 'v4', 'v5', 'v6', 'v7'
    t = [f'v{i}' for i in range(8, 16)]
    KF, S, KF2, WF, S0, OA = 16, 48, 80, 112, 128, 136
    QF = WF
    AX = 152
    vFs, vU0, vU1, vSb0, vSb1, vGa, vXr, vGb, vNrm, vM, vXh, vK0 = [f'v{i}' for i in range(140, 152)]
    sLd = 's53'
    WS = 's[8:11]'
    v = lambda i, n=1: f'v{i}' if n == 1 else f'v[{i}:{i + n - 1}]'

    def rb(x):
        a(f'v_cvt_pk_bf16_f32 {x}, {x}, {x}\nv_lshlrev_b32 {x}, 16, {x}')

    def wait_landed(n):
        L, D = a.new('L_wl'), a.new('L_wd')
        a(f's_cmp_ge_i32 {sLd}, {n}\ns_cbranch_scc1 {D}')
        a.label(L)
        a(f'ds_read_b32 {t[7]}, {vL4} offset:{LANDED}')
        timeout()
        a(f'''s_waitcnt lgkmcnt(0)
            v_readfirstlane_b32 {sLd}, {t[7]}
            s_cmp_lt_i32 {sLd}, {n}
            s_cbranch_scc1 {L}''')
        a.label(D)

    def set_freed(n):
        a(f'v_mov_b32 {t[7]}, {n}\nds_write_b32 {vW4}, {t[7]} offset:{FREED}')

    def csync(k, reads=''):
        L = a.new('L_cs')
        a(f'v_mov_b32 {t[7]}, {k}\nds_write_b32 {vW4}, {t[7]} offset:{FLAG}')
        a.label(L)
        a(f'ds_read_b32 {t[7]}, {vFl} offset:{FLAG}')
        a(reads)
        timeout()
        a(f'''s_waitcnt lgkmcnt(0)
            v_cmp_gt_u32 vcc, {k}, {t[7]}
            s_cbranch_vccnz {L}''')

    def act_reads(base, n, dst):
        return '\n'.join(f'ds_read_b128 {v(dst + 4 * j, 4)}, {vAct} offset:{base + 256 * j}' for j in range(n))

    def tr_reads(addr, blocks, dst):
        for i, off in enumerate(blocks):
            a(f'ds_read_b64_tr_b16 {v(dst + 4 * i, 2)}, {addr} offset:{off}')
            a(f'ds_read_b64_tr_b16 {v(dst + 4 * i + 2, 2)}, {addr} offset:{off + 4096}')

    def mfma(d, A, B, first):
        a(f'v_mfma_f32_16x16x32_bf16 {v(d, 4)}, {v(A, 4)}, {v(B, 4)}, {"0" if first else v(d, 4)}')

    def publish4(d, soff):
        for r in range(4):
            a(f'v_min_u32 {v(d + r)}, -2, {v(d + r)}')
        a(f'buffer_store_dwordx4 {v(d, 4)}, {vPub}, {WS}, {soff} offen sc1')

    def gather(loads, regs, sleep=0, canary=None, extra='', cfirst=False):
        L, D = a.new('L_g'), a.new('L_gd')
        if cfg.nocomm & 1:
            return
        if cfg.nocomm & 4:
            a(loads)
            a('s_waitcnt vmcnt(0)')
            return
        if canary is not None and cfirst:
            a(f's_branch {L}_c')
        a.label(L)
        a(loads)
        timeout()
        a('s_waitcnt vmcnt(0)')
        rs = list(regs)
        if len(rs) == 1:
            cur = v(rs[0])
        else:
            if len(rs) == 2:
                a(f'v_max_u32 {t[7]}, {v(rs[0])}, {v(rs[1])}')
                rs = []
            else:
                a(f'v_max3_u32 {t[7]}, {v(rs[0])}, {v(rs[1])}, {v(rs[2])}')
                rs = rs[3:]
            while rs:
                if len(rs) >= 2:
                    a(f'v_max3_u32 {t[7]}, {t[7]}, {v(rs[0])}, {v(rs[1])}')
                    rs = rs[2:]
                else:
                    a(f'v_max_u32 {t[7]}, {t[7]}, {v(rs[0])}')
                    rs = []
            cur = t[7]
        a(f'v_cmp_eq_u32 vcc, -1, {cur}')
        a(extra)
        if canary is not None:
            cl_, cr, cs = canary
            a(f's_cbranch_vccz {D}')
            a.label(L + '_s')
            if cs:
                a(f's_sleep {cs}')
            a.label(L + '_c')
            a(cl_)
            timeout()
            a(f's_waitcnt vmcnt(0)\nv_cmp_eq_u32 vcc, -1, {v(cr)}\ns_cbranch_vccnz {L}_s\ns_branch {L}')
            a.label(D)
        elif sleep:
            a(f's_cbranch_vccz {D}\ns_sleep {sleep}\ns_branch {L}')
            a.label(D)
        else:
            a(f's_cbranch_vccnz {L}')

    def act_pos(dst, k, b):
        a(f'''v_lshrrev_b32 {dst}, 5, {k}
            v_lshlrev_b32 {dst}, 8, {dst}
            v_bfe_u32 {t[6]}, {k}, 2, 2
            v_lshl_add_u32 {dst}, {t[6]}, 6, {dst}
            v_lshl_add_u32 {dst}, {b}, 4, {dst}
            v_bfe_u32 {t[6]}, {k}, 4, 1
            v_lshl_add_u32 {dst}, {t[6]}, 3, {dst}
            v_and_b32 {t[6]}, 3, {k}
            v_lshl_add_u32 {dst}, {t[6]}, 1, {dst}''')

    def swap_reduce4(r):
        a(f'''v_permlane32_swap_b32 {v(r)}, {v(r + 2)}
            v_permlane32_swap_b32 {v(r + 1)}, {v(r + 3)}
            v_add_f32 {v(r)}, {v(r)}, {v(r + 2)}
            v_add_f32 {v(r + 1)}, {v(r + 1)}, {v(r + 3)}
            v_permlane16_swap_b32 {v(r)}, {v(r + 1)}
            v_add_f32 {v(r)}, {v(r)}, {v(r + 1)}''')

    def dpp(op, x, ctl):
        a(f'{op}_dpp {x}, {x}, {x} {ctl} row_mask:0xf bank_mask:0xf')

    def sum_sq(src, n, sm, sq):
        for i in range(n):
            a(f'v_lshlrev_b32 {t[4]}, 16, {v(src + i)}\nv_and_b32 {t[5]}, 0xffff0000, {v(src + i)}')
            if i == 0:
                a(f'v_add_f32 {sm}, {t[4]}, {t[5]}\nv_mul_f32 {sq}, {t[4]}, {t[4]}')
            else:
                a(f'v_add_f32 {sm}, {sm}, {t[4]}\nv_fmac_f32 {sq}, {t[4]}, {t[4]}\nv_add_f32 {sm}, {sm}, {t[5]}')
            a(f'v_fmac_f32 {sq}, {t[5]}, {t[5]}')

    def ln_finish(sm, sq):
        a(f'''v_mul_f32 {sm}, {f32(1 / 1024)}, {sm}
            v_mul_f32 {sq}, {f32(1 / 1024)}, {sq}
            v_fma_f32 {sq}, -{sm}, {sm}, {sq}
            v_max_f32 {sq}, 0, {sq}''')
        rb(sq)
        rb(sm)
        a(f'v_add_f32 {sq}, {f32(1e-5)}, {sq}')
        rb(sq)
        a(f'v_sqrt_f32 {sq}, {sq}')
        rb(sq)
        a(f'v_rcp_f32 {sq}, {sq}')

    def warm(r):
        if not cfg.warm:
            return
        a('s_mov_b64 exec, 0')
        for w in range(7):
            a(f's_cmp_eq_u32 {sW}, {w}\ns_cbranch_scc1 {r}_e{w}')
        a(f's_branch {r}_e7')
        a.label(f'{r}_ret')
        a('s_mov_b64 exec, -1')

    def wb(r):
        if cfg.warm:
            a(f';warm_begin {r}')

    def we(r):
        if cfg.warm:
            a(f';warm_end {r}')

    def tail_clears():
        a(f'''s_lshl_b32 {T0}, s2, 3
            s_add_u32 {T0}, {T0}, {sW}
            s_lshl_b32 {T0}, {T0}, 10
            s_add_u32 {T0}, {T0}, {1 << 20}
            v_lshlrev_b32 {t[2]}, 4, v0
            v_mov_b32 {v(S0)}, -1
            v_mov_b32 {v(S0 + 1)}, -1
            v_mov_b32 {v(S0 + 2)}, -1
            v_mov_b32 {v(S0 + 3)}, -1
            buffer_store_dwordx4 {v(S0, 4)}, {t[2]}, {WS}, {T0} offen sc1 ; clrT
            s_cmp_lt_u32 s2, 192
            s_cbranch_scc1 L_noclr2
            s_lshl_b32 {T0}, {sW}, 6
            s_add_u32 {T0}, {T0}, s2
            s_lshl_b32 {T0}, {T0}, 10
            s_add_u32 {T0}, {T0}, {(3 << 20) - 192 * 1024}
            buffer_store_dwordx4 {v(S0, 4)}, {t[2]}, {WS}, {T0} offen sc1 ; clrT''')
        a.label('L_noclr2')

    vCf, vCa = v(AX + 4), v(AX + 5)

    def cf_issue():
        a(f'''v_and_b32 {vCa}, 1, v0
            v_lshlrev_b32 {vCa}, 7, {vCa}
            global_load_dword {vCf}, {vCa}, {sp(pDBG)} sc1''')

    def cf_check():
        L, D = a.new('L_cf'), a.new('L_cfd')
        if cfg.nocomm:
            return
        a.label(L)
        a(f'''s_waitcnt vmcnt(0)
            v_cmp_ne_u32 vcc, 32, {vCf}
            s_cbranch_vccz {D}
            s_sleep 16
            global_load_dword {vCf}, {vCa}, {sp(pDBG)} sc1''')
        timeout()
        a(f's_branch {L}')
        a.label(D)

    a.label('L_consumer')
    if DBG:
        for i in range(32):
            a(f's_mov_b32 s{64 + i}, 0')
    a(f'''s_sub_u32 {sW}, {sW}, 1
        s_mov_b32 {sLd}, 0
        v_lshlrev_b32 {vL4}, 2, v0
        v_and_b32 {vFl}, 28, {vL4}
        s_lshl_b32 {T0}, {sW}, 2
        v_mov_b32 {vW4}, {T0}''')
    a(f'''v_lshrrev_b32 {t[0]}, 2, v0
        v_and_b32 {t[1]}, 7, {t[0]}
        v_lshlrev_b32 {t[1]}, 1, {t[1]}
        v_bfe_u32 {t[2]}, v0, 1, 1
        s_lshl_b32 {T0}, {sW}, 1
        v_or_b32 {t[2]}, {T0}, {t[2]}
        v_xor_b32 {t[2]}, {t[2]}, {t[1]}
        v_lshlrev_b32 {vTr}, 8, {t[0]}
        v_lshl_add_u32 {vTr}, {t[2]}, 4, {vTr}
        v_and_b32 {t[2]}, 1, v0
        v_lshl_add_u32 {vTr}, {t[2]}, 3, {vTr}''')
    a(f'''v_lshrrev_b32 {t[0]}, 4, v0
        v_and_b32 {t[1]}, 3, v0
        v_lshlrev_b32 {vAct}, 6, {t[0]}
        v_lshl_add_u32 {vAct}, {t[1]}, 4, {vAct}
        v_lshlrev_b32 {vPub}, 4, {t[0]}
        v_lshl_add_u32 {vPub}, {t[1]}, 6, {vPub}
        v_and_b32 {t[2]}, 12, v0
        v_lshl_or_b32 {vPub}, {t[2]}, 27, {vPub}
        v_and_b32 {t[2]}, 7, v0
        v_lshlrev_b32 {vP}, 7, {t[0]}
        v_lshl_add_u32 {vP}, {t[2]}, 4, {vP}
        v_lshlrev_b32 {t[2]}, 1, {t[2]}
        v_xor_b32 {t[2]}, {t[2]}, {t[0]}
        v_and_b32 {t[1]}, 15, v0
        v_lshlrev_b32 {vK0}, 8, {t[1]}
        v_lshl_add_u32 {vK0}, {t[2]}, 4, {vK0}''')
    a(f'''s_lshl_b32 {T0}, {sW}, 10
        v_lshl_add_u32 {t[2]}, v0, 4, {T0}
        s_lshl_b32 {T0}, {sXcd}, 8
        s_lshl_b32 {T1}, {sW}, 5
        s_add_u32 {T0}, {T0}, {T1}
        v_lshlrev_b32 {t[3]}, 11, {t[0]}
        v_lshl_add_u32 {t[3]}, {t[1]}, 1, {t[3]}
        v_add_u32 {t[3]}, {T0}, {t[3]}
        s_lshr_b32 {T0}, {sW}, 1
        s_lshl_b32 {T0}, {T0}, 11
        s_and_b32 {T1}, {sW}, 1
        s_lshl_b32 {T1}, {T1}, 8
        s_add_u32 {T0}, {T0}, {T1}
        s_and_b32 {T1}, s2, 3
        s_lshl_b32 {T1}, {T1}, 9
        s_add_u32 {T0}, {T0}, {T1}
        v_add_u32 {t[4]}, {T0}, {vL4}
        s_waitcnt lgkmcnt(0)
        global_load_dwordx4 {v(KF, 4)}, {t[2]}, {sp(pX)}
        global_load_ushort {vXh}, {t[3]}, {sp(pX)}
        global_load_dword {v(KF + 4)}, {t[4]}, {sp(pC)}
        s_mov_b32 s8, s{pWS}
        s_mov_b32 s9, s{pWS + 1}
        s_mov_b32 s10, {WS_END}
        s_mov_b32 s11, 0x20000''')
    if cfg.l2code:
        a('s_getpc_b64 s[12:13]')
        a.label('L_pc')
        a(f'''s_mov_b32 s14, L_end-L_pc
            s_mov_b32 s15, 0x20000
            s_lshl_b32 {T0}, {sW}, 12
            v_lshlrev_b32 {t[5]}, 6, v0
            buffer_load_dword {v(KF + 5)}, {t[5]}, s[12:15], {T0} offen''')
    if DBG:
        stamp('entry')
        a('s_mov_b32 s64, s96')
    stamp('start')
    if cfg.clrearly:
        tail_clears()
    a('s_barrier\ns_cmp_lt_u32 s2, 192\ns_cbranch_scc1 L_noclear')
    a(f'''s_sub_u32 {T0}, s2, 192
        s_lshl_b32 {T0}, {T0}, 3
        s_add_u32 {T0}, {T0}, {sW}
        s_lshl_b32 {T0}, {T0}, 11
        v_lshlrev_b32 {t[2]}, 4, v0
        v_mov_b32 {v(KF + 8)}, -1
        v_mov_b32 {v(KF + 9)}, -1
        v_mov_b32 {v(KF + 10)}, -1
        v_mov_b32 {v(KF + 11)}, -1''')
    assert OP <= (1 << 20) and WS_END <= (3 << 20) + (512 << 10)
    for i in range(2):
        a(f'buffer_store_dwordx4 {v(KF + 8, 4)}, {t[2]}, {WS}, {T0} offen offset:{i * 1024} sc1 ; clrF')
    a('s_waitcnt vmcnt(0)')
    csync(1)
    a(f'''s_cmp_lg_u32 {sW}, 0
        s_cbranch_scc1 L_stats
        s_and_b32 {T0}, s2, 1
        s_lshl_b32 {T0}, {T0}, 7
        s_mov_b32 {T1}, 1
        s_atomic_add {T1}, {sp(pDBG)}, {T0} glc
        s_waitcnt lgkmcnt(0)''')
    stamp('cf_sig')
    a('s_branch L_stats')
    a.label('L_noclear')
    a(f'''s_and_b32 {T0}, {sW}, 1
        s_lshl_b32 {T0}, {T0}, 7
        v_lshl_add_u32 {t[0]}, v0, 1, {T0}
        s_lshr_b32 {T0}, {sW}, 1
        v_mov_b32 {t[1]}, {T0}''')
    act_pos(t[2], t[0], t[1])
    a(f'''s_waitcnt vmcnt(0)
        v_lshlrev_b32 {t[0]}, 16, {v(KF + 4)}
        v_and_b32 {t[1]}, 0xffff0000, {v(KF + 4)}
        v_mul_f32 {t[3]}, {f32(-LOG2E)}, {t[0]}
        v_mul_f32 {t[4]}, {f32(-LOG2E)}, {t[1]}
        v_exp_f32 {t[3]}, {t[3]}
        v_exp_f32 {t[4]}, {t[4]}
        v_add_f32 {t[3]}, 1.0, {t[3]}
        v_add_f32 {t[4]}, 1.0, {t[4]}
        v_rcp_f32 {t[3]}, {t[3]}
        v_rcp_f32 {t[4]}, {t[4]}
        v_mul_f32 {t[0]}, {t[0]}, {t[3]}
        v_mul_f32 {t[1]}, {t[1]}, {t[4]}
        v_cvt_pk_bf16_f32 {t[0]}, {t[0]}, {t[1]}
        ds_write_b32 {t[2]}, {t[0]} offset:{ACT_A}''')
    a.label('L_stats')
    sum_sq(KF, 4, t[0], t[1])
    a(f'''v_permlane32_swap_b32 {t[0]}, {t[1]}
        v_add_f32 {t[0]}, {t[0]}, {t[1]}
        v_mov_b32 {t[1]}, {t[0]}
        v_permlane16_swap_b32 {t[0]}, {t[1]}
        v_add_f32 {t[0]}, {t[0]}, {t[1]}''')
    for r in (8, 4, 2, 1):
        dpp('v_add_f32', t[0], f'row_ror:{r}')
    a(f'''v_lshrrev_b32 {t[1]}, 5, v0
        v_lshlrev_b32 {t[1]}, 2, {t[1]}
        v_lshl_add_u32 {t[1]}, {vW4}, 1, {t[1]}
        ds_write_b32 {t[1]}, {t[0]} offset:{ST1}''')
    a(f'v_lshrrev_b32 {t[0]}, 4, v0\nv_lshlrev_b32 {t[0]}, 4, {t[0]}')
    csync(2, f'ds_read_b128 {v(AX, 4)}, {t[0]} offset:{ST1}')
    stamp('cs2')
    a('s_cmp_ge_u32 s2, 192\ns_cbranch_scc1 L_noA')
    a(act_reads(ACT_A, 8, S))
    a(f'v_add_u32 {t[0]}, {slot(N_A)}, {vTr}')
    for hf in range(2):
        wait_landed(N_A + 4 * hf + 4)
        if hf:
            stamp(f'A_land')
        tr_reads(t[0], [8192 * (4 * hf + j) for j in range(4)], KF + 16 * hf)
        a('s_waitcnt lgkmcnt(0)')
        set_freed(N_A + 4 * hf + 4)
        for j in range(4 * hf, 4 * hf + 4):
            mfma(OA, KF + 4 * j, S + 4 * j, j == 0)
    a.label('L_noA')
    a(f'v_add_f32 {t[0]}, {v(AX)}, {v(AX + 2)}\nv_add_f32 {t[1]}, {v(AX + 1)}, {v(AX + 3)}')
    ln_finish(t[0], t[1])
    a(f'v_lshlrev_b32 {vXh}, 16, {vXh}\nv_sub_f32 {vNrm}, {vXh}, {t[0]}')
    rb(vNrm)
    a(f'v_mul_f32 {vNrm}, {vNrm}, {t[1]}')
    rb(vNrm)
    a(f'v_add_u32 {t[0]}, {slot(N_Q)}, {vTr}')
    wait_landed(N_K)
    tr_reads(t[0], [8192 * j for j in range(4)], WF)
    a(f's_add_u32 s54, {sW}, {N_K}\ns_waitcnt lgkmcnt(0)')
    set_freed('s54')
    sLead = 's44'
    a(f'''s_cmp_lt_u32 s2, 192
        s_cselect_b32 {sLead}, 0, 8''')

    def pace(n):
        a(f's_add_u32 {T0}, {sLead}, {n}')
        wait_landed(T0)

    def k_pull(i, dst):
        a(f's_add_u32 {T0}, s54, 1')
        wait_landed(T0)
        a(f'''s_and_b32 {T0}, s54, 15
            s_lshl_b32 {T0}, {T0}, 13
            s_add_u32 {T0}, {T0}, {RING0}
            v_add_u32 {t[0]}, {T0}, {vK0}
            v_xor_b32 {t[1]}, 64, {t[0]}
            v_xor_b32 {t[2]}, 0x80, {t[0]}
            v_xor_b32 {t[3]}, 0xc0, {t[0]}''')
        for tt in range(2):
            for j in range(4):
                a(f'ds_read_b128 {v(dst + 16 * tt + 4 * j, 4)}, {t[j]} offset:{4096 * tt}')
        if i < 3:
            a(f's_add_u32 s54, s54, 8')
        else:
            a(f's_mov_b32 s54, {N_V}')
        a('s_waitcnt lgkmcnt(0)')
        set_freed('s54')

    pace(N_K + cfg.cfat)
    cf_issue()
    cf_check()
    stamp('cf_ok')
    a('s_cmp_ge_u32 s2, 192\ns_cbranch_scc1 L_noA2')
    a(f'''s_and_b32 {T0}, s2, 3
        s_mul_i32 {T0}, {T0}, 384
        s_lshr_b32 {T1}, s2, 2
        s_lshl_b32 {T1}, {T1}, 3
        s_add_u32 {T0}, {T0}, {T1}
        s_add_u32 {T0}, {T0}, {sW}
        s_lshl_b32 {T0}, {T0}, 8''')
    assert MODP == 0
    publish4(OA, T0)
    a.label('L_noA2')
    k_pull(0, KF)
    pace(N_K + cfg.e1at)
    stamp('e1_go')
    G = KF2 + 16
    a(f'''s_lshl_b32 {T0}, {sXcd}, 3
        s_add_u32 {T0}, {T0}, {sW}
        s_lshl_b32 {T0}, {T0}, 8
        v_add_u32 {t[0]}, {T0}, {vL4}
        v_add_u32 {t[1]}, {64 * 256}, {t[0]}
        s_mov_b32 {T1}, {384 * 256}
        s_mov_b32 {T2}, {2 * 384 * 256}
        s_mov_b32 {T3}, {3 * 384 * 256}
        v_and_b32 {t[2]}, 15, v0
        s_lshl_b32 {T0}, {sW}, 4
        v_add_u32 {t[2]}, {T0}, {t[2]}
        v_lshrrev_b32 {t[3]}, 4, v0''')
    act_pos(t[4], t[2], t[3])
    so = ['0', T1, T2, T3]
    gather('\n'.join(f'buffer_load_dword {v(G + 2 * k + m)}, {t[m]}, {WS}, {so[k]} offen sc1' for k in range(4) for m in range(2)),
           range(G, G + 8), sleep=cfg.fsleep)
    stamp('e1')
    for m in range(2):
        a(f'''v_add_f32 {v(G + m)}, {v(G + m)}, {v(G + 2 + m)}
            v_add_f32 {v(G + 4 + m)}, {v(G + 4 + m)}, {v(G + 6 + m)}
            v_add_f32 {v(G + m)}, {v(G + m)}, {v(G + 4 + m)}''')
        rb(v(G + m))
    a(f'v_add_f32 {v(G + 1)}, 1.0, {v(G + 1)}')
    rb(v(G + 1))
    a(f'v_mul_f32 {v(G + 1)}, {vNrm}, {v(G + 1)}')
    rb(v(G + 1))
    a(f'''v_add_f32 {v(G)}, {v(G)}, {v(G + 1)}
        v_cvt_pk_bf16_f32 {v(G)}, {v(G)}, {v(G)}
        ds_write_b16 {t[4]}, {v(G)} offset:{ACT_B}''')
    csync(3, act_reads(ACT_B, 4, KF2))
    for j in range(4):
        mfma(OA, WF + 4 * j, KF2 + 4 * j, j == 0)
    a(f'''s_lshl_b32 {T0}, {sXcd}, 8
        s_lshl_b32 {T1}, {sJ}, 3
        s_add_u32 {T0}, {T0}, {T1}
        s_add_u32 {T0}, {T0}, {sW}
        s_lshl_b32 {T0}, {T0}, 8
        s_add_u32 {T0}, {T0}, {QP}''')
    publish4(OA, T0)
    stamp('B_pub')
    if not cfg.clrearly:
        tail_clears()
    warm('WS')
    k_pull(1, S)
    k_pull(2, KF2)
    pace(N_K + cfg.e2at)
    stamp('e2_go')
    sP, sB, sG = 's55', 's56', 's57'
    a(f'''s_lshr_b32 {T0}, {sJ}, 4
        s_lshl_b32 {sP}, {sXcd}, 1
        s_add_u32 {sP}, {sP}, {T0}
        s_and_b32 {sB}, {sP}, 3
        s_lshr_b32 {sG}, {sP}, 2''')
    G = QF
    a(f'''s_lshl_b32 {T0}, {sG}, 3
        s_add_u32 {T0}, {T0}, {sW}
        s_lshl_b32 {T0}, {T0}, 11
        s_lshl_b32 {T1}, {sB}, 6
        s_add_u32 {T0}, {T0}, {T1}
        s_add_u32 {T0}, {T0}, {QP}
        v_lshrrev_b32 {t[0]}, 3, v0
        v_lshlrev_b32 {t[0]}, 8, {t[0]}
        v_lshl_add_u32 {t[0]}, {vFl}, 1, {t[0]}
        v_add_u32 {t[0]}, {T0}, {t[0]}
        v_add_u32 {t[1]}, {4 * 65536}, {t[0]}
        s_mov_b32 {T1}, {65536}
        s_mov_b32 {T2}, {2 * 65536}
        s_mov_b32 {T3}, {3 * 65536}
        v_lshlrev_b32 {t[2]}, 14, {vFl}''')
    gather('\n'.join(f'buffer_load_dwordx2 {v(G + 2 * k, 2)}, {t[k >> 2]}, {WS}, {so[k & 3]} offen sc1' for k in range(8)),
           range(G, G + 16), sleep=cfg.fsleep,
           canary=(f'buffer_load_dword {v(G)}, {t[2]}, {WS}, {T0} offen sc1', G, cfg.fsleep))
    stamp('e2')
    wb('WS')
    for st in (8, 4, 2):
        for i in range(st):
            a(f'v_add_f32 {v(G + i)}, {v(G + i)}, {v(G + i + st)}')
    a(f'''v_cvt_pk_bf16_f32 {t[2]}, {v(G)}, {v(G + 1)}
        s_mul_i32 {T0}, {sW}, 272
        v_add_u32 {t[0]}, {T0}, {vL4}
        ds_write_b32 {t[0]}, {t[2]} offset:{QB}
        v_mul_u32_u24 {t[0]}, 68, {vFl}
        v_lshrrev_b32 {t[1]}, 4, v0
        v_lshl_add_u32 {t[0]}, {t[1]}, 4, {t[0]}''')
    csync(4, '\n'.join(f'ds_read_b128 {v(QF + 4 * j, 4)}, {t[0]} offset:{QB + 64 * j}' for j in range(4)))
    stamp('q_ready')
    a(f'''s_cmp_lg_u32 {sW}, 7
        s_cbranch_scc1 L_noct
        s_and_b32 {T0}, s2, 1
        s_lshl_b32 {T0}, {T0}, 7
        s_add_u32 {T0}, {T0}, 64
        s_mov_b32 s45, 1
        s_atomic_add s45, {sp(pDBG)}, {T0} glc''')
    a.label('L_noct')
    SC = [S0, KF, KF + 8, KF + 16]
    for i in range(4):
        src = [KF, S, KF2, S][i]
        if i == 3:
            k_pull(3, src)
        for j in range(4):
            for tt in range(2):
                mfma(SC[i] + 4 * tt, src + 16 * tt + 4 * j, QF + 4 * j, j == 0)
        for r in range(0, 8, 2):
            x, y = v(SC[i] + r), v(SC[i] + r + 1)
            a(f'''v_cvt_pk_bf16_f32 {y}, {x}, {y}
                v_lshlrev_b32 {x}, 16, {y}
                v_and_b32 {y}, 0xffff0000, {y}
                v_mul_f32 {x}, {f32(128 ** -0.5)}, {x}
                v_mul_f32 {y}, {f32(128 ** -0.5)}, {y}
                v_cvt_pk_bf16_f32 {y}, {x}, {y}
                v_lshlrev_b32 {x}, 16, {y}
                v_and_b32 {y}, 0xffff0000, {y}''')
            if i == 0 and r == 0:
                a(f'v_max_f32 {vM}, {x}, {y}')
            else:
                a(f'v_max3_f32 {vM}, {vM}, {x}, {y}')
    stamp('qk_done')
    a(f'''v_mov_b32 {t[0]}, {vM}
        v_permlane32_swap_b32 {vM}, {t[0]}
        v_max_f32 {vM}, {vM}, {t[0]}
        v_mov_b32 {t[0]}, {vM}
        v_permlane16_swap_b32 {vM}, {t[0]}
        v_max_f32 {vM}, {vM}, {t[0]}
        v_lshlrev_b32 {t[1]}, 3, {vFl}
        v_add_u32 {t[2]}, {t[1]}, {vW4}
        ds_write_b32 {t[2]}, {vM} offset:{MX}
''')
    csync(5, f'ds_read_b128 {v(KF2, 4)}, {t[1]} offset:{MX}\nds_read_b128 {v(KF2 + 4, 4)}, {t[1]} offset:{MX + 16}')
    a(f'''v_max3_f32 {vM}, {v(KF2)}, {v(KF2 + 1)}, {v(KF2 + 2)}
        v_max3_f32 {vM}, {vM}, {v(KF2 + 3)}, {v(KF2 + 4)}
        v_max3_f32 {vM}, {vM}, {v(KF2 + 5)}, {v(KF2 + 6)}
        v_max_f32 {vM}, {vM}, {v(KF2 + 7)}
        s_lshl_b32 {T0}, {sW}, 9
        v_add_u32 {t[3]}, {T0}, {vP}''')
    for i in range(4):
        for r in range(8):
            x = v(SC[i] + r)
            a(f'v_sub_f32 {x}, {x}, {vM}\nv_mul_f32 {x}, {f32(LOG2E)}, {x}\nv_exp_f32 {x}, {x}')
        for r in range(8):
            x = v(SC[i] + r)
            if i == 0 and r == 0:
                continue
            if i == 0 and r == 1:
                a(f'v_add_f32 {t[0]}, {v(SC[0])}, {x}')
            else:
                a(f'v_add_f32 {t[0]}, {t[0]}, {x}')
        for r in range(4):
            a(f'v_cvt_pk_bf16_f32 {v(KF2 + 4 * i + r)}, {v(SC[i] + 2 * r)}, {v(SC[i] + 2 * r + 1)}')
        a(f'ds_write_b128 {t[3]}, {v(KF2 + 4 * i, 4)} offset:{PB + 4096 * i}')
    a(f'''v_mov_b32 {t[4]}, {t[0]}
        v_permlane32_swap_b32 {t[0]}, {t[4]}
        v_add_f32 {t[0]}, {t[0]}, {t[4]}
        v_mov_b32 {t[4]}, {t[0]}
        v_permlane16_swap_b32 {t[0]}, {t[4]}
        v_add_f32 {t[0]}, {t[0]}, {t[4]}
        ds_write_b32 {t[2]}, {t[0]} offset:{LS}''')
    csync(6, f'ds_read_b128 {v(KF2, 4)}, {t[1]} offset:{LS}\nds_read_b128 {v(KF2 + 4, 4)}, {t[1]} offset:{LS + 16}')
    a(f's_cmp_lg_u32 {sW}, 0\ns_cbranch_scc1 L_noml')
    for st in (4, 2, 1):
        for i in range(st):
            a(f'v_add_f32 {v(KF2 + i)}, {v(KF2 + i)}, {v(KF2 + i + st)}')
    a(f'''v_min_u32 {v(KF2 + 1)}, -2, {v(KF2)}
        v_min_u32 {v(KF2)}, -2, {vM}
        s_lshl_b32 {T0}, {sP}, 4
        s_and_b32 {T1}, {sJ}, 15
        s_add_u32 {T0}, {T0}, {T1}
        s_lshl_b32 {T0}, {T0}, 6
        s_add_u32 {T0}, {T0}, {ML}
        v_lshlrev_b32 {t[0]}, 3, v0
        s_mov_b64 exec, 0xff
        buffer_store_dwordx2 {v(KF2, 2)}, {t[0]}, {WS}, {T0} offen sc1
        s_mov_b64 exec, -1''')
    a.label('L_noml')
    we('WS')
    stamp('p_ready')
    a(f'''v_mov_b32 {v(OA)}, 0
        v_mov_b32 {v(OA + 1)}, 0
        v_mov_b32 {v(OA + 2)}, 0
        v_mov_b32 {v(OA + 3)}, 0''')

    def v_loop(end):
        L = a.new('L_v')
        a.label(L)
        a(f'''s_and_b32 {T1}, s54, 15
            s_lshl_b32 {T1}, {T1}, 13
            s_add_u32 {T1}, {T1}, {RING0}
            v_add_u32 {t[0]}, {T1}, {vTr}
            s_add_u32 s54, s54, 1
            ds_read_b128 {v(KF + 4, 4)}, {vP} offset:{PB}''')
        wait_landed('s54')
        tr_reads(t[0], [0], KF)
        a(f'''v_add_u32 {vP}, 512, {vP}
            v_mov_b32 {t[7]}, s54
            s_cmp_lt_u32 s54, {end}
            s_waitcnt lgkmcnt(0)''')
        mfma(OA, KF, KF + 4, False)
        a(f'ds_write_b32 {vW4}, {t[7]} offset:{FREED}\ns_cbranch_scc1 {L}')

    v_loop(N_V + cfg.preat)
    stamp('v_half')
    a(f'''s_lshl_b32 {T0}, {sP}, 10
        s_add_u32 {T0}, {T0}, {ML}
        v_lshlrev_b32 {t[0]}, 3, v0
        v_and_b32 {t[1]}, 1, v0
        v_lshlrev_b32 {t[1]}, 7, {t[1]}
        s_movk_i32 {T1}, 128''')
    gather(f'''buffer_load_dwordx2 {v(KF + 8, 2)}, {t[0]}, {WS}, {T0} offen sc1
               buffer_load_dwordx2 {v(KF + 10, 2)}, {t[0]}, {WS}, {T0} offen offset:512 sc1
               global_load_dword {v(KF + 12)}, {t[1]}, {sp(pDBG)} offset:64 sc1''', range(KF + 8, KF + 12), sleep=cfg.fsleep,
           extra=f'v_cmp_ne_u32 s[12:13], {T1}, {v(KF + 12)}\ns_or_b64 vcc, vcc, s[12:13]')

    def red_hi(op, x):
        dpp(op, x, 'row_ror:8')
        a(f'''v_mov_b32 {t[4]}, {x}
            v_permlane16_swap_b32 {x}, {t[4]}
            {op} {x}, {x}, {t[4]}
            v_mov_b32 {t[4]}, {x}
            v_permlane32_swap_b32 {x}, {t[4]}
            {op} {x}, {x}, {t[4]}''')
    a(f'v_max_f32 {t[1]}, {v(KF + 8)}, {v(KF + 10)}')
    red_hi('v_max_f32', t[1])
    a(f'''v_sub_f32 {v(KF + 8)}, {v(KF + 8)}, {t[1]}
        v_sub_f32 {v(KF + 10)}, {v(KF + 10)}, {t[1]}
        v_sub_f32 {vM}, {vM}, {t[1]}
        v_mul_f32 {v(KF + 8)}, {f32(LOG2E)}, {v(KF + 8)}
        v_mul_f32 {v(KF + 10)}, {f32(LOG2E)}, {v(KF + 10)}
        v_mul_f32 {vM}, {f32(LOG2E)}, {vM}
        v_exp_f32 {v(KF + 8)}, {v(KF + 8)}
        v_exp_f32 {v(KF + 10)}, {v(KF + 10)}
        v_exp_f32 {vM}, {vM}
        v_mul_f32 {t[1]}, {v(KF + 8)}, {v(KF + 9)}
        v_fmac_f32 {t[1]}, {v(KF + 10)}, {v(KF + 11)}''')
    red_hi('v_add_f32', t[1])
    a(f'v_rcp_f32 {t[1]}, {t[1]}\nv_mul_f32 {vFs}, {vM}, {t[1]}')
    sKsE, sNsE, sNtF, sBF = 's58', 's59', 's60', 's61'
    a(f'''s_sub_u32 {T0}, {sJ}, 4
        s_and_b32 {sKsE}, {T0}, 3
        s_lshr_b32 {T0}, {T0}, 2
        s_lshl_b32 {T0}, {T0}, 3
        s_add_u32 {sNsE}, {T0}, {sXcd}
        s_lshl_b32 {T0}, {sXcd}, 3
        s_lshr_b32 {T1}, {sJ}, 2
        s_add_u32 {sNtF}, {T0}, {T1}
        s_and_b32 {sBF}, {sJ}, 3
        s_mov_b32 {T1}, {384 * 256}
        s_mov_b32 {T2}, {2 * 384 * 256}
        s_mov_b32 {T3}, {3 * 384 * 256}
        s_cmp_lt_u32 s2, 32
        s_cbranch_scc1 L_preR''')
    a(f'''s_lshl_b32 {T0}, {sKsE}, 3
        s_add_u32 {T0}, {T0}, {sW}
        s_lshl_b32 {T0}, {T0}, 9
        s_add_u32 {T0}, {T0}, {192 * 256}
        v_add_u32 {t[0]}, {T0}, {t[0]}
        v_add_u32 {t[1]}, {64 * 256}, {t[0]}''')
    gather('\n'.join(f'buffer_load_dwordx2 {v(S + 4 * k + 2 * m, 2)}, {t[m]}, {WS}, {so[k]} offen sc1' for k in range(4) for m in range(2)),
           range(S, S + 16), sleep=cfg.fsleep)
    for i in range(8):
        a(f'v_add_f32 {v(S + i)}, {v(S + i)}, {v(S + i + 8)}')
    for i, d in enumerate((vSb0, vSb1, vU0, vU1)):
        a(f'v_add_f32 {d}, {v(S + i)}, {v(S + i + 4)}')
        rb(d)
    for d in (vU0, vU1):
        a(f'v_add_f32 {d}, 1.0, {d}')
        rb(d)
    a('s_branch L_preF')
    a.label('L_preR')
    a(f'''s_cmp_ge_u32 {sW}, 2
        s_cbranch_scc1 L_preF
        s_lshl_b32 {T0}, s2, 1
        s_add_u32 {T0}, {T0}, {sW}
        v_bfe_u32 {t[2]}, v0, 2, 2
        v_lshlrev_b32 {t[2]}, 11, {t[2]}
        v_and_b32 {t[3]}, 3, v0
        v_lshl_add_u32 {t[2]}, {t[3]}, 3, {t[2]}
        v_lshrrev_b32 {t[3]}, 4, v0
        v_lshl_add_u32 {t[2]}, {t[3]}, 1, {t[2]}
        s_lshl_b32 {T0}, {T0}, 5
        v_add_u32 {t[2]}, {T0}, {t[2]}
        global_load_ushort {vXr}, {t[2]}, {sp(pX)}
        s_lshl_b32 {T0}, {T0}, 3
        s_add_u32 {T0}, {T0}, {128 * 256}
        v_mul_u32_u24 {t[3]}, {384 * 256}, {t[3]}
        v_and_b32 {t[2]}, 15, v0
        v_lshl_add_u32 {t[3]}, {t[2]}, 4, {t[3]}''')
    gather(f'buffer_load_dwordx4 {v(S, 4)}, {t[3]}, {WS}, {T0} offen sc1', range(S, S + 4), sleep=cfg.fsleep)
    swap_reduce4(S)
    a(f'v_mov_b32 {vGa}, {v(S)}\nv_lshlrev_b32 {vXr}, 16, {vXr}')
    rb(vGa)
    a.label('L_preF')
    a(f'''s_cmp_lg_u32 {sW}, 0
        s_cbranch_scc1 L_predone
        s_lshl_b32 {T0}, {sNtF}, 2
        s_add_u32 {T0}, {T0}, {sBF}
        s_lshl_b32 {T0}, {T0}, 6
        s_add_u32 {T0}, {T0}, {320 * 256}
        v_lshrrev_b32 {t[3]}, 4, v0
        v_mul_u32_u24 {t[3]}, {384 * 256}, {t[3]}
        v_and_b32 {t[2]}, 3, v0
        v_lshl_add_u32 {t[3]}, {t[2]}, 4, {t[3]}''')
    gather(f'buffer_load_dwordx4 {v(S, 4)}, {t[3]}, {WS}, {T0} offen sc1', range(S, S + 4), sleep=cfg.fsleep)
    swap_reduce4(S)
    a(f'v_mov_b32 {vGb}, {v(S)}')
    rb(vGb)
    a.label('L_predone')
    vOpA, vE3A, vE3P = v(AX), v(AX + 1), v(AX + 2)
    sOpO, sE3O, sDpO = 's12', 's13', 's14'
    sSl = 's15'
    a(f'''s_lshl_b32 {T0}, {sG}, 3
        s_add_u32 {T0}, {T0}, {sW}
        s_lshl_b32 {T0}, {T0}, 2
        s_add_u32 {T0}, {T0}, {sB}
        s_lshl_b32 {T0}, {T0}, 4
        s_and_b32 {T1}, {sJ}, 15
        s_add_u32 {T0}, {T0}, {T1}
        s_lshl_b32 {T0}, {T0}, 8
        s_add_u32 {sOpO}, {T0}, {OP}
        v_lshrrev_b32 {t[0]}, 4, v0
        v_lshlrev_b32 {t[0]}, 3, {t[0]}
        v_lshl_add_u32 {vOpA}, {vFl}, 3, {t[0]}
        v_and_b32 {t[0]}, 8, v0
        v_lshl_or_b32 {vOpA}, {t[0]}, 27, {vOpA}''')
    a(f'''s_lshl_b32 {sSl}, {sXcd}, 2
        s_lshr_b32 {T0}, {sJ}, 3
        s_add_u32 {sSl}, {sSl}, {T0}
        s_lshl_b32 {T0}, {sSl}, 2
        s_lshr_b32 {T1}, {sW}, 1
        s_add_u32 {T0}, {T0}, {T1}
        s_lshl_b32 {T0}, {T0}, 12
        s_and_b32 {T2}, {sW}, 1
        s_lshl_b32 {T2}, {T2}, 7
        s_add_u32 {T0}, {T0}, {T2}
        s_add_u32 {sE3O}, {T0}, {OP}
        v_lshrrev_b32 {t[0]}, 5, v0
        v_and_b32 {t[1]}, 31, v0
        v_lshlrev_b32 {vE3A}, 8, {t[0]}
        v_lshl_add_u32 {vE3A}, {t[1]}, 2, {vE3A}
        s_lshr_b32 {T2}, {T2}, 1
        v_lshl_add_u32 {t[1]}, {t[1]}, 1, {t[0]}
        v_add_u32 {t[1]}, {T2}, {t[1]}
        v_mov_b32 {t[2]}, {T1}''')
    act_pos(vE3P, t[1], t[2])
    a(f'''s_and_b32 {T0}, {sJ}, 7
        s_lshl_b32 {T0}, {T0}, 3
        s_add_u32 {T0}, {T0}, {sW}
        s_lshl_b32 {T0}, {T0}, 5
        s_add_u32 {T0}, {T0}, {sSl}
        s_lshl_b32 {T0}, {T0}, 8
        s_add_u32 {sDpO}, {T0}, {DP}''')
    stamp('pre_done')
    warm('WT')
    stamp('warm_done')
    v_loop(N_O)
    wb('WT')
    stamp('v_done')
    for r in range(4):
        a(f'v_mul_f32 {v(OA + r)}, {vFs}, {v(OA + r)}')
    a(f'''v_cvt_pk_bf16_f32 {v(OA)}, {v(OA)}, {v(OA + 1)}
        v_cvt_pk_bf16_f32 {v(OA + 1)}, {v(OA + 2)}, {v(OA + 3)}
        v_min_u32 {v(OA)}, -2, {v(OA)}
        v_min_u32 {v(OA + 1)}, -2, {v(OA + 1)}
        buffer_store_dwordx2 {v(OA, 2)}, {vOpA}, {WS}, {sOpO} offen sc1''')
    if cfg.ackwait:
        a('s_waitcnt vmcnt(0)')
    stamp('O_pub')
    gather('\n'.join(f'buffer_load_dword {v(KF + i)}, {vE3A}, {WS}, {sE3O} offen offset:{512 * i} sc1' for i in range(8)),
           range(KF, KF + 8),
           canary=(f'buffer_load_dword {v(KF)}, {vE3A}, {WS}, {sE3O} offen sc1', KF, cfg.tsleep))
    stamp('e3')
    for i in range(8):
        a(f'v_lshlrev_b32 {v(KF + 8 + i)}, 16, {v(KF + i)}\nv_and_b32 {v(KF + i)}, 0xffff0000, {v(KF + i)}')
    for st in (4, 2, 1):
        for i in range(st):
            a(f'v_add_f32 {v(KF + 8 + i)}, {v(KF + 8 + i)}, {v(KF + 8 + i + st)}\nv_add_f32 {v(KF + i)}, {v(KF + i)}, {v(KF + i + st)}')
    a(f'''v_permlane32_swap_b32 {v(KF + 8)}, {v(KF)}
        v_add_f32 {v(KF)}, {v(KF)}, {v(KF + 8)}
        v_cvt_pk_bf16_f32 {v(KF)}, {v(KF)}, {v(KF)}
        ds_write_b16 {vE3P}, {v(KF)} offset:{ACT_D}
        v_add_u32 {t[0]}, {slot(N_O)}, {vTr}''')
    wait_landed(N_G)
    tr_reads(t[0], [8192 * j for j in range(4)], WF)
    csync(7, act_reads(ACT_D, 4, S))
    for j in range(4):
        mfma(OA, WF + 4 * j, S + 4 * j, j == 0)
    publish4(OA, sDpO)
    stamp('D_pub')
    a('s_cmp_ge_u32 s2, 32\ns_cbranch_scc1 L_E')
    a(f'''s_cmp_ge_u32 {sW}, 2
        s_cbranch_scc1 L_end
        s_lshl_b32 {T0}, s2, 1
        s_add_u32 {T0}, {T0}, {sW}
        s_lshl_b32 {T2}, {T0}, 7
        s_add_u32 {T2}, {T2}, {X1}
        s_lshl_b32 {T0}, {T0}, 13
        s_add_u32 {T0}, {T0}, {DP}
        s_add_u32 {T1}, {T0}, 4096
        v_lshlrev_b32 {t[0]}, 4, v0
        v_and_b32 {t[1]}, 15, v0
        v_lshrrev_b32 {t[2]}, 5, v0
        v_lshlrev_b32 {t[2]}, 2, {t[2]}
        v_lshl_add_u32 {t[1]}, {t[1]}, 3, {t[2]}
        v_and_b32 {t[2]}, 16, v0
        v_lshl_or_b32 {t[1]}, {t[2]}, 26, {t[1]}''')
    if cfg.ackwait:
        a('s_waitcnt vmcnt(0)')
    gather('\n'.join(f'buffer_load_dwordx4 {v(KF + 4 * i, 4)}, {t[0]}, {WS}, {T0 if i < 4 else T1} offen offset:{1024 * (i & 3)} sc1' for i in range(8)),
           range(KF, KF + 32))
    stamp('e4a')
    for st in (16, 8, 4):
        for i in range(st):
            a(f'v_add_f32 {v(KF + i)}, {v(KF + i)}, {v(KF + i + st)}')
    swap_reduce4(KF)
    rb(v(KF))
    a(f'v_mul_f32 {v(KF)}, {vGa}, {v(KF)}')
    rb(v(KF))
    a(f'''v_add_f32 {v(KF)}, {vXr}, {v(KF)}
        v_mov_b32 {v(KF + 1)}, {v(KF)}
        v_permlane16_swap_b32 {v(KF)}, {v(KF + 1)}
        v_cvt_pk_bf16_f32 {v(KF)}, {v(KF)}, {v(KF + 1)}
        v_min_u32 {v(KF)}, -2, {v(KF)}
        buffer_store_dword {v(KF)}, {t[1]}, {WS}, {T2} offen sc1''')
    a('s_branch L_final')
    a.label('L_E')
    a(f'''s_lshl_b32 {T0}, {sW}, 10
        s_add_u32 {T0}, {T0}, {X1}
        s_lshl_b32 {T1}, {sKsE}, 3
        s_add_u32 {T1}, {T1}, {sW}
        s_lshl_b32 {T1}, {T1}, 8
        s_add_u32 {T1}, {T1}, {X1}
        v_lshlrev_b32 {t[0]}, 4, v0
        v_lshrrev_b32 {t[1]}, 5, v0
        s_lshl_b32 {T2}, {sW}, 1
        v_add_u32 {t[1]}, {T2}, {t[1]}
        v_lshlrev_b32 {t[1]}, 4, {t[1]}
        v_lshrrev_b32 {t[2]}, 1, {vFl}
        v_add_u32 {t[1]}, {t[1]}, {t[2]}
        v_bfe_u32 {t[2]}, v0, 3, 2''')
    act_pos(t[3], t[1], t[2])
    a(f'''v_lshlrev_b32 {t[2]}, 6, {t[2]}
        v_bfe_u32 {t[1]}, v0, 1, 2
        v_lshlrev_b32 {t[1]}, 6, {t[1]}
        v_lshl_add_u32 {t[1]}, {vW4}, 1, {t[1]}
        v_lshrrev_b32 {v(AX + 4)}, 5, v0
        v_lshl_add_u32 {t[1]}, {v(AX + 4)}, 2, {t[1]}''')
    gather(f'''buffer_load_dwordx4 {v(S, 4)}, {t[0]}, {WS}, {T0} offen sc1
               buffer_load_dword {v(S + 4)}, {vL4}, {WS}, {T1} offen sc1''', range(S, S + 5),
           canary=(f'buffer_load_dword {v(S + 4)}, {vL4}, {WS}, {T1} offen sc1', S + 4, cfg.tsleep))
    stamp('e4b')
    sm, sq = v(AX + 4), v(AX + 5)
    sum_sq(S, 4, sm, sq)
    a(f'''v_permlane32_swap_b32 {sm}, {sq}
        v_add_f32 {sm}, {sm}, {sq}
        v_mov_b32 {sq}, {sm}
        v_permlane16_swap_b32 {sm}, {sq}
        v_add_f32 {sm}, {sm}, {sq}''')
    dpp('v_add_f32', sm, 'row_ror:8')
    dpp('v_add_f32', sm, 'quad_perm:[1,0,3,2]')
    a(f'ds_write_b32 {t[1]}, {sm} offset:{ST2}')
    csync(8, '\n'.join(f'ds_read_b128 {v(S + 8 + 4 * i, 4)}, {t[2]} offset:{ST2 + 16 * i}' for i in range(4)))
    for st in (8, 4, 2):
        for i in range(st):
            a(f'v_add_f32 {v(S + 8 + i)}, {v(S + 8 + i)}, {v(S + 8 + i + st)}')
    ln_finish(v(S + 8), v(S + 9))
    x0, x1 = v(S + 5), v(S + 4)
    a(f'''v_lshlrev_b32 {x0}, 16, {x1}
        v_and_b32 {x1}, 0xffff0000, {x1}
        v_sub_f32 {x0}, {x0}, {v(S + 8)}
        v_sub_f32 {x1}, {x1}, {v(S + 8)}''')

    def rb2(p, q):
        a(f'v_cvt_pk_bf16_f32 {q}, {p}, {q}\nv_lshlrev_b32 {p}, 16, {q}\nv_and_b32 {q}, 0xffff0000, {q}')
    rb2(x0, x1)
    a(f'v_mul_f32 {x0}, {x0}, {v(S + 9)}\nv_mul_f32 {x1}, {x1}, {v(S + 9)}')
    rb2(x0, x1)
    a(f'v_mul_f32 {x0}, {x0}, {vU0}\nv_mul_f32 {x1}, {x1}, {vU1}')
    rb2(x0, x1)
    a(f'''v_add_f32 {x0}, {x0}, {vSb0}
        v_add_f32 {x1}, {x1}, {vSb1}
        v_cvt_pk_bf16_f32 {x0}, {x0}, {x1}
        ds_write_b32 {t[3]}, {x0} offset:{ACT_E}''')
    a(f'''s_lshr_b32 {T0}, {sW}, 2
        s_lshl_b32 {T1}, {T0}, 7
        v_xor_b32 {t[0]}, {T1}, {vTr}
        s_lshl_b32 {T1}, {T0}, 15
        s_add_u32 {T1}, {T1}, {slot(N_G)}
        v_add_u32 {t[0]}, {T1}, {t[0]}
        v_xor_b32 {t[1]}, 0x80, {t[0]}
        s_lshl_b32 {T0}, {T0}, 2
        s_add_u32 {T0}, {T0}, {N_U}''')
    wait_landed(T0)
    tr_reads(t[0], [8192 * j for j in range(4)], KF)
    tr_reads(t[1], [8192 * j for j in range(4)], KF + 16)
    a('s_waitcnt lgkmcnt(0)')
    csync(9, act_reads(ACT_E, 8, S))
    for j in range(8):
        mfma(OA, KF + 4 * j, S + 4 * j, j == 0)
    a(f'''s_lshl_b32 {T1}, {sNsE}, 13
        s_add_u32 {T1}, {T1}, {EP}
        s_lshl_b32 {T0}, {sKsE}, 3
        s_add_u32 {T0}, {T0}, {sW}
        s_lshl_b32 {T0}, {T0}, 8
        s_add_u32 {T0}, {T0}, {T1}''')
    publish4(OA, T0)
    stamp('E_pub')
    a(f'''s_lshl_b32 {T0}, {sW}, 7
        s_add_u32 {T1}, {T1}, {T0}
        s_add_u32 {T2}, {T1}, 4096
        v_lshrrev_b32 {t[0]}, 5, v0
        v_and_b32 {t[1]}, 31, v0
        v_lshlrev_b32 {t[0]}, 10, {t[0]}
        v_lshl_add_u32 {t[0]}, {t[1]}, 2, {t[0]}
        v_and_b32 {t[1]}, 15, v0
        s_lshr_b32 {T0}, {sW}, 1
        s_lshl_b32 {T0}, {T0}, 4
        v_add_u32 {t[1]}, {T0}, {t[1]}
        v_bfe_u32 {t[2]}, v0, 4, 1
        s_and_b32 {T0}, {sW}, 1
        s_lshl_b32 {T0}, {T0}, 1
        v_add_u32 {t[2]}, {T0}, {t[2]}''')
    act_pos(t[3], t[1], t[2])
    if cfg.ackwait:
        a('s_waitcnt vmcnt(0)')
    gather('\n'.join(f'buffer_load_dword {v(KF + i)}, {t[0]}, {WS}, {T1 if i < 2 else T2} offen offset:{2048 * (i & 1)} sc1' for i in range(4)),
           range(KF, KF + 4))
    stamp('e4c')
    x, u = v(KF), v(KF + 1)
    a(f'''v_add_f32 {x}, {x}, {u}
        v_add_f32 {v(KF + 2)}, {v(KF + 2)}, {v(KF + 3)}
        v_add_f32 {x}, {x}, {v(KF + 2)}''')
    rb(x)
    c1 = -2.0 * 0.7978845608028654 * LOG2E
    a(f'''v_mov_b32 {u}, {x}
        v_permlane32_swap_b32 {x}, {u}
        v_mul_f32 {t[1]}, {x}, {x}
        v_mov_b32 {t[2]}, {f32(c1)}
        v_fmac_f32 {t[2]}, {f32(c1 * 0.044715)}, {t[1]}
        v_mul_f32 {t[2]}, {t[2]}, {x}
        v_exp_f32 {t[2]}, {t[2]}
        v_add_f32 {t[2]}, 1.0, {t[2]}
        v_rcp_f32 {t[2]}, {t[2]}
        v_mul_f32 {x}, {x}, {t[2]}''')
    rb(x)
    a(f'''v_mul_f32 {x}, {x}, {u}
        v_cvt_pk_bf16_f32 {x}, {x}, {x}
        ds_write_b16 {t[3]}, {x} offset:{ACT_F}
        v_add_u32 {t[0]}, {slot(N_F)}, {vTr}''')
    wait_landed(N_END)
    tr_reads(t[0], [8192 * j for j in range(4)], WF)
    csync(10, act_reads(ACT_F, 2, S))
    for j in range(2):
        for hf in range(2):
            mfma(KF + 4 * hf, WF + 8 * hf + 4 * j, S + 4 * j, j == 0)
    a(f'''s_lshl_b32 {T0}, {sKsE}, 4
        s_add_u32 {T0}, {T0}, {sW}
        s_mul_i32 {T0}, {T0}, 56
        s_add_u32 {T0}, {T0}, {sNsE}
        s_lshl_b32 {T0}, {T0}, 8
        s_add_u32 {T0}, {T0}, {FP}
        s_add_u32 {T1}, {T0}, {8 * 56 * 256}''')
    publish4(KF, T0)
    publish4(KF + 4, T1)
    stamp('F_pub')
    a.label('L_final')
    a(f'''s_cmp_lg_u32 {sW}, 0
        s_cbranch_scc1 L_end
        s_mul_i32 {T0}, {sNtF}, {56 * 256}
        s_lshl_b32 {T1}, {sBF}, 6
        s_add_u32 {T0}, {T0}, {T1}
        s_add_u32 {T0}, {T0}, {FP}
        s_add_u32 {T1}, {T0}, 4096
        s_add_u32 {T2}, {T0}, 8192
        s_add_u32 {T3}, {T0}, 12288
        v_lshrrev_b32 {t[0]}, 2, v0
        v_and_b32 {t[1]}, 3, v0
        v_lshlrev_b32 {t[0]}, 8, {t[0]}
        v_lshl_add_u32 {t[0]}, {t[1]}, 4, {t[0]}
        v_and_b32 {t[2]}, 32, v0
        v_lshl_or_b32 {t[2]}, {t[2]}, 25, {t[0]}
        s_lshl_b32 s12, {sNtF}, 2
        s_add_u32 s12, s12, {sBF}
        s_lshl_b32 s12, s12, 5
        s_add_u32 s12, s12, {X1}
        v_lshrrev_b32 {t[3]}, 5, v0
        v_lshlrev_b32 {t[3]}, 2, {t[3]}
        v_lshl_add_u32 {t[3]}, {t[1]}, 3, {t[3]}
        v_lshrrev_b32 {t[4]}, 4, v0
        v_lshlrev_b32 {t[4]}, 1, {t[4]}
        v_lshl_add_u32 {t[4]}, {t[1]}, 3, {t[4]}
        s_lshl_b32 s13, {sBF}, 11
        s_lshl_b32 s14, {sNtF}, 5
        s_add_u32 s13, s13, s14
        v_add_u32 {t[4]}, s13, {t[4]}
        v_and_b32 {t[5]}, 16, v0''')
    if cfg.ackwait:
        a('s_waitcnt vmcnt(0)')
    gather(f'''buffer_load_dwordx4 {v(S, 4)}, {t[0]}, {WS}, {T0} offen sc1
               buffer_load_dwordx4 {v(S + 4, 4)}, {t[0]}, {WS}, {T1} offen sc1
               buffer_load_dwordx4 {v(S + 8, 4)}, {t[0]}, {WS}, {T2} offen sc1
               buffer_load_dwordx4 {v(S + 12, 4)}, {t[2]}, {WS}, {T3} offen sc1
               buffer_load_dword {v(S + 16)}, {t[3]}, {WS}, s12 offen sc1''', range(S, S + 17))
    stamp('e5')
    for st in (8, 4):
        for i in range(st):
            a(f'v_add_f32 {v(S + i)}, {v(S + i)}, {v(S + i + st)}')
    swap_reduce4(S)
    dpp('v_add_f32', v(S), 'row_ror:8')
    dpp('v_add_f32', v(S), 'row_ror:4')
    rb(v(S))
    a(f'v_mul_f32 {v(S)}, {vGb}, {v(S)}')
    rb(v(S))
    a(f'''v_lshrrev_b32 {v(S + 16)}, {t[5]}, {v(S + 16)}
        v_lshlrev_b32 {v(S + 16)}, 16, {v(S + 16)}
        v_add_f32 {v(S)}, {v(S + 16)}, {v(S)}
        v_cvt_pk_bf16_f32 {v(S)}, {v(S)}, {v(S)}
        s_mov_b32 exec_lo, 0x000f000f
        s_mov_b32 exec_hi, 0x000f000f
        global_store_short {t[4]}, {v(S)}, {sp(pOUT)}''')
    we('WT')
    stamp('out')
    if cfg.probe:
        i = stamp_names.index(cfg.probe)
        if cfg.probewg >= 0:
            a(f's_cmp_lg_u32 s2, {cfg.probewg}\ns_cbranch_scc1 L_noprobe')
        a(f'''s_sub_u32 {T0}, s{64 + i}, s64
            s_mul_i32 {T0}, {T0}, 10
            s_add_u32 {T0}, {T0}, 10000''')
        a.label('L_probe')
        a(f'''s_memrealtime s[62:63]
            s_waitcnt lgkmcnt(0)
            s_sub_u32 {T1}, s62, s64
            s_cmp_lt_u32 {T1}, {T0}
            s_cbranch_scc1 L_probe''')
        a.label('L_noprobe')
    if DBG:
        a(f's_lshl_b32 {T1}, s2, 1')
        dump_stamps(T1)
    a.label('L_abort')
    a.label('L_end')
    a('s_endpgm')

    if cfg.noclr & 1:
        a.lines = [x for x in a.lines if 'clrT' not in x]
    if cfg.noclr & 2:
        a.lines = [x for x in a.lines if 'clrF' not in x]
    if cfg.noclr & 4:
        a.lines = [x for x in a.lines if not (x.startswith('buffer_store') and 'clr' not in x)]
    if cfg.clrnt:
        a.lines = [x.replace('sc1 ; clr', 'sc1 nt ; clr') for x in a.lines]
    if cfg.nocomm & 2:
        a.lines = [x for x in a.lines if not (x.startswith('buffer_store') or x.startswith('s_atomic'))]
    body = a.finish(step=cfg.padstep)
    print('code bytes', a.code_bytes, 'pads', a.npads, file=sys.stderr)
    hdr = open('cdna_kernels/' + NAME + '.s.ref').read().split('; Override launch')[0]
    txt = hdr + f'''; Persistent fused kernel: one workgroup per CU, 1 LDS-DMA loader wave + 8 consumer waves.
; @launch grid=(256,1,1) block=(576,1,1) lds={LDS_BYTES}
.amdgcn_target "amdgcn-amd-amdhsa--gfx950"
.text
.globl {NAME}_kernel
.p2align 8
.type {NAME}_kernel,@function
{NAME}_kernel:
{body}.section .rodata,"a"
.p2align 6
.amdhsa_kernel {NAME}_kernel
  .amdhsa_next_free_vgpr 160
  .amdhsa_next_free_sgpr 102
  .amdhsa_accum_offset 160
  .amdhsa_group_segment_fixed_size 0
  .amdhsa_kernarg_size 112
  .amdhsa_user_sgpr_count 2
  .amdhsa_user_sgpr_kernarg_segment_ptr 1
  .amdhsa_system_sgpr_workgroup_id_x 1
.end_amdhsa_kernel
'''
    return txt, dict(consumer=list(stamp_names), loader=loader_names)


def parser():
    p = argparse.ArgumentParser()
    p.add_argument('-o', dest='out', default='out.s')
    p.add_argument('--debug', type=int, default=0)
    p.add_argument('--wmain', type=int, default=24)
    p.add_argument('--wtail', type=int, default=16)
    p.add_argument('--fsleep', type=int, default=4)
    p.add_argument('--tsleep', type=int, default=2)
    p.add_argument('--cfat', type=int, default=0)
    p.add_argument('--e1at', type=int, default=8)
    p.add_argument('--e2at', type=int, default=22)
    p.add_argument('--preat', type=int, default=16)
    p.add_argument('--warm', type=int, default=1)
    p.add_argument('--l2code', type=int, default=1)
    p.add_argument('--padstep', type=int, default=64)
    p.add_argument('--nocomm', type=int, default=0)
    p.add_argument('--trace', type=int, default=0)
    p.add_argument('--noclr', type=int, default=0)
    p.add_argument('--clrnt', type=int, default=0)
    p.add_argument('--clrearly', type=int, default=0)
    p.add_argument('--ackwait', type=int, default=1)
    p.add_argument('--probe', default='')
    p.add_argument('--probewg', type=int, default=40)
    p.add_argument('--timeout', type=int, default=1 << 20)
    return p


if __name__ == '__main__':
    cfg = parser().parse_args()
    txt, names = build(cfg)
    open(cfg.out, 'w').write(txt)
    import json
    json.dump(names, open(cfg.out + '.json', 'w'))
```

```python
import sys, struct, argparse
from asmlib import Asm

NAME = 'adaLN_cond__gqa_block_cached__geglu_ffn__decode'


def f32(x):
    return '0x%08x' % struct.unpack('<I', struct.pack('<f', x))[0]


LOG2E = 1.4426950408889634

MODP = 0
QP = MODP + 4 * 384 * 256
ML = QP + 8 * 256 * 256
X1 = ML + 16384
OP = X1 + 16384
DP = OP + 32 * 64 * 512
EP = DP + 64 * 32 * 256
FP = EP + 56 * 4 * 8 * 256
WS_END = FP + 64 * 56 * 256
STAMPS = 8 << 20
TAGK = 0x9E3779B1

LANDED = 0
FREED = 256
FLAG = 320
ST1 = 384
ST2 = 512
MX = 768
LS = 1024
ACT_A = 2048
ACT_B = 4096
ACT_D = 5120
ACT_E = 6144
ACT_F = 8192
QB = 9216
PB = 16384
RING0 = 32768
LDS_BYTES = 163840

N_A, N_Q, N_K, N_O, N_V, N_G, N_U, N_F, N_END = 0, 8, 12, 44, 48, 80, 84, 88, 92


def slot(n):
    return RING0 + (n & 15) * 8192


def build(cfg):
    a = Asm()
    DBG = cfg.debug
    W_MAIN, W_TAIL = cfg.wmain, cfg.wtail

    pX, pK, pV, pWQ, pWO, pG, pU, pD, pC, pWM, pOUT, pDBG, pWS = 16, 18, 20, 22, 24, 28, 30, 32, 34, 36, 38, 40, 42
    sp = lambda p: f's[{p}:{p + 1}]'
    sW, sTO = 's3', 's48'
    sXcd, sJ = 's4', 's5'
    T0, T1, T2, T3 = 's49', 's50', 's51', 's52'
    stamp_n = [0]
    stamp_names = []

    def stamp(name):
        if not DBG:
            return
        i = stamp_n[0]
        stamp_n[0] += 1
        stamp_names.append(name)
        assert i < 32
        a(f's_memrealtime s[62:63]\ns_waitcnt lgkmcnt(0)\ns_mov_b32 s{64 + i}, s62')

    def dump_stamps(row):
        if not DBG:
            return
        a('s_mov_b64 exec, -1')
        for i in range(32):
            a(f'v_writelane_b32 v8, s{64 + i}, {i}')
        a(f'''s_lshl_b32 {T0}, {row}, 7
            s_add_u32 {T0}, {T0}, {STAMPS}
            v_lshlrev_b32 v9, 2, v0
            v_add_u32 v9, {T0}, v9
            s_mov_b32 exec_hi, 0
            global_store_dword v9, v8, {sp(pWS)}''')

    def timeout():
        a(f's_sub_u32 {sTO}, {sTO}, 1\ns_cbranch_scc1 L_abort')

    if DBG:
        a('s_memrealtime s[96:97]')
    a(f'''s_cmp_ge_u32 s2, 256
        s_cbranch_scc1 L_end
        s_load_dwordx16 s[16:31], s[0:1], 0
        s_load_dwordx8 s[32:39], s[0:1], 64
        s_load_dwordx4 s[40:43], s[0:1], 96
        v_lshrrev_b32 v1, 6, v0
        v_and_b32 v0, 63, v0
        v_readfirstlane_b32 {sW}, v1
        s_and_b32 {sXcd}, s2, 7
        s_lshr_b32 {sJ}, s2, 3
        s_mov_b32 {sTO}, {cfg.timeout}
        s_cmp_lg_u32 {sW}, 0
        s_cbranch_scc1 L_consumer''')

    sOff, sStep, sJump, sEnd, sN, sLds, sPub = 's12', 's13', 's14', 's15', 's44', 's45', 's53'
    vO0, vO1, vF, vFa, vL4, vR, vC0, vC1, vT = 'v1', 'v2', 'v3', 'v4', 'v5', 'v6', 'v7', 'v10', 'v11'
    if DBG:
        for i in range(32):
            a(f's_mov_b32 s{64 + i}, 0')
    a(f'''s_setprio 3
        v_lshlrev_b32 {vL4}, 2, v0
        v_mov_b32 {vF}, 0
        ds_write_b32 {vL4}, {vF} offset:{LANDED}
        ds_write_b32 {vL4}, {vF} offset:{FREED}
        v_and_b32 {vFa}, 28, {vL4}
        v_lshrrev_b32 {vR}, 4, v0
        v_and_b32 {vC0}, 15, v0
        v_lshlrev_b32 {vT}, 1, {vR}
        v_xor_b32 {vC0}, {vC0}, {vT}
        v_lshlrev_b32 {vC0}, 4, {vC0}
        v_xor_b32 {vC1}, 0x80, {vC0}
        s_mov_b32 s11, 0x20000
        s_mov_b32 {sPub}, 0''')

    def seg(ptr, nbytes, pitch, n0=None, jump=None, fold=False):
        a(f'''s_mov_b32 s8, s{ptr}
            s_mov_b32 s9, s{ptr + 1}
            s_mov_b32 s10, {nbytes}
            s_mov_b32 {sStep}, {4 * pitch}
            s_mov_b32 {sJump}, {jump if jump is not None else 4 * pitch}''')
        if pitch is not None:
            a(f'v_mul_u32_u24 {vT}, {pitch}, {vR}')
            if not fold:
                a(f'v_add_u32 {vO0}, {vT}, {vC0}\nv_add_u32 {vO1}, {vT}, {vC1}')
            else:
                for vO, vC in ((vO0, vC0), (vO1, vC1)):
                    a(f'''v_and_b32 v12, 0x80, {vC}
                        v_mul_u32_u24 v12, {pitch}, v12
                        v_and_b32 v13, 0x70, {vC}
                        v_add3_u32 {vO}, {vT}, v12, v13''')

    def run(end, which):
        a(f's_mov_b32 {sEnd}, {end}\ns_call_b64 s[46:47], L_loop{which}')

    a(f's_cmp_ge_u32 s2, 192\ns_cbranch_scc1 L_ld_noA')
    a(f'''s_and_b32 {T0}, s2, 3
        s_mul_i32 {T0}, {T0}, {256 * 12288}
        s_lshr_b32 {T1}, s2, 2
        s_lshl_b32 {T1}, {T1}, 8
        s_add_u32 {sOff}, {T0}, {T1}
        s_mov_b32 {sN}, {N_A}
        s_waitcnt lgkmcnt(0)''')
    stamp('ld_args')
    seg(pWM, 1024 * 12288, 12288)
    run(N_A + 2, 'M')
    a('s_waitcnt lgkmcnt(0)\ns_barrier')
    run(N_Q, 'M')
    a(f'''s_lshl_b32 {T0}, {sXcd}, 20
        s_lshl_b32 {T1}, {sJ}, 8
        s_add_u32 {sOff}, {T0}, {T1}''')
    seg(pWQ, 1024 * 8192, 8192)
    a('s_branch L_ld_q')
    a.label('L_ld_noA')
    a(f'''s_lshl_b32 {T0}, {sXcd}, 20
        s_lshl_b32 {T1}, {sJ}, 8
        s_add_u32 {sOff}, {T0}, {T1}
        s_mov_b32 {sN}, {N_Q}
        s_waitcnt lgkmcnt(0)''')
    seg(pWQ, 1024 * 8192, 8192)
    run(N_Q + 2, 'M')
    a('s_waitcnt lgkmcnt(0)\ns_barrier')
    a.label('L_ld_q')
    run(N_K, 'M')
    stamp('ld_q_issued')
    a(f'''s_lshr_b32 {T0}, {sJ}, 4
        s_lshl_b32 {T1}, {sXcd}, 1
        s_add_u32 {T0}, {T0}, {T1}
        s_and_b32 {T1}, {T0}, 3
        s_lshl_b32 {T1}, {T1}, 2
        s_lshr_b32 {T0}, {T0}, 2
        s_add_u32 {T0}, {T0}, {T1}
        s_lshl_b32 {T0}, {T0}, 22
        s_and_b32 {T1}, {sJ}, 15
        s_lshl_b32 {T1}, {T1}, 18
        s_add_u32 s54, {T0}, {T1}
        s_mov_b32 {sOff}, s54''')
    seg(pK, 1 << 26, 256)
    run(N_O, 'M')
    stamp('ld_k_issued')
    a(f'''s_lshl_b32 {T0}, {sXcd}, 2
        s_lshr_b32 {T1}, {sJ}, 3
        s_add_u32 {T0}, {T0}, {T1}
        s_lshr_b32 {T1}, {T0}, 3
        s_lshl_b32 {T1}, {T1}, 21
        s_and_b32 {T0}, {T0}, 7
        s_lshl_b32 {T0}, {T0}, 15
        s_add_u32 {T0}, {T0}, {T1}
        s_and_b32 {T1}, {sJ}, 7
        s_lshl_b32 {T1}, {T1}, 8
        s_add_u32 {sOff}, {T0}, {T1}''')
    seg(pWO, 4096 * 2048, 2048, jump=(128 - 12) * 2048)
    run(N_V, 'M')
    a(f's_mov_b32 {sOff}, s54')
    seg(pV, 1 << 26, 256)
    run(N_G, 'M')
    stamp('ld_v_issued')
    a('s_cmp_lt_u32 s2, 32\ns_cbranch_scc1 L_ld_drain')
    a(f'''s_sub_u32 {T0}, {sJ}, 4
        s_and_b32 s55, {T0}, 3
        s_lshr_b32 {T0}, {T0}, 2
        s_lshl_b32 {T0}, {T0}, 3
        s_add_u32 s56, {T0}, {sXcd}
        s_mul_i32 {T0}, s55, {256 * 7168}
        s_lshl_b32 {T1}, s56, 7
        s_add_u32 s54, {T0}, {T1}
        s_mov_b32 {sOff}, s54''')
    seg(pG, 1024 * 7168, 7168, fold=True)
    run(N_U, 'T')
    a(f's_mov_b32 {sOff}, s54\ns_mov_b32 s8, s{pU}\ns_mov_b32 s9, s{pU + 1}')
    run(N_F, 'T')
    stamp('ld_u_issued')
    a(f'''s_lshl_b32 {T0}, s56, 17
        s_lshl_b32 {T1}, s55, 9
        s_add_u32 s54, {T0}, {T1}
        s_mov_b32 {sOff}, s54''')
    seg(pD, 3584 * 2048, 2048)
    run(N_F + 2, 'T')
    a(f's_add_u32 {sOff}, s54, 256')
    run(N_END, 'T')
    a.label('L_ld_drain')
    for k in (3, 2, 1, 0):
        if 8 * k <= max(W_TAIL, W_MAIN) - 2:
            a(f'''s_sub_u32 {T0}, {sN}, {k}
                s_max_i32 {sPub}, {sPub}, {T0}
                v_mov_b32 {vT}, {sPub}
                s_waitcnt vmcnt({8 * k})
                ds_write_b32 {vL4}, {vT} offset:{LANDED}''')
    stamp('ld_done')
    if DBG:
        a(f's_lshl_b32 {T1}, s2, 1\ns_add_u32 {T1}, {T1}, 1')
        a(f'''s_lshl_b32 {T0}, s2, 9
            s_add_u32 {T0}, {T0}, {STAMPS + (1 << 20)}
            v_add_u32 v9, {T0}, {vL4}
            global_store_dword v9, v20, {sp(pWS)}
            global_store_dword v9, v21, {sp(pWS)} offset:256''')
        dump_stamps(T1)
    loader_names = list(stamp_names)
    a('s_endpgm')

    def loader_loop(which, W):
        assert W % 2 == 0
        a.label(f'L_loop{which}')
        a(f'''s_waitcnt lgkmcnt(0)
            s_sub_i32 {T0}, {sN}, 16
            v_cmp_ge_i32 vcc, {T0}, {vF}
            s_and_b32 {sLds}, {sN}, 15
            s_lshl_b32 {sLds}, {sLds}, 13
            s_cbranch_vccnz L_stall{which}''')
        a.label(f'L_go{which}')
        if DBG and cfg.trace:
            a(f'''s_memrealtime s[62:63]
                s_mov_b32 m0, {sN}
                s_waitcnt lgkmcnt(0)
                s_cmp_ge_u32 {sN}, 64
                s_cbranch_scc1 L_tr{which}
                v_writelane_b32 v20, s62, m0''')
            a.label(f'L_tr{which}')
            a('v_writelane_b32 v21, s62, m0')
        for o in range(8):
            a(f's_add_u32 m0, {sLds}, {RING0 + o * 1024}')
            if o == 0:
                a(f'ds_read_b32 {vF}, {vFa} offset:{FREED}')
            else:
                a(f's_add_u32 {sOff}, {sOff}, {sJump if o == 4 else sStep}')
            a(f'buffer_load_dwordx4 {vO1 if o & 1 else vO0}, s[8:11], {sOff} offen nt lds')
            if o & 1:
                pub = (o + 3 - W) % 8 == 0
                if pub:
                    a(f'''s_add_i32 {T0}, {sN}, {(o + 3 - W) // 8}
                        s_max_i32 {sPub}, {sPub}, {T0}
                        v_mov_b32 {vT}, {sPub}''')
                a(f's_waitcnt vmcnt({W - 2})')
                if pub:
                    a(f'ds_write_b32 {vL4}, {vT} offset:{LANDED}')
        a(f'''s_add_u32 {sOff}, {sOff}, {sJump}
            s_add_u32 {sN}, {sN}, 1
            s_cmp_lt_u32 {sN}, {sEnd}
            s_cbranch_scc1 L_loop{which}
            s_setpc_b64 s[46:47]''')
        a.label(f'L_stall{which}')
        a(f'ds_read_b32 {vF}, {vFa} offset:{FREED}')
        timeout()
        a(f'''s_waitcnt lgkmcnt(0)
            v_cmp_ge_i32 vcc, {T0}, {vF}
            s_cbranch_vccnz L_stall{which}
            s_branch L_go{which}''')

    loader_loop('M', W_MAIN)
    loader_loop('T', W_TAIL)

    stamp_n[0] = 0
    stamp_names.clear()
    vL4, vTr, vAct, vPub, vFl, vW4, vP = 'v1', 'v2', 'v3', 'v4', 'v5', 'v6', 'v7'
    t = [f'v{i}' for i in range(8, 16)]
    KF, S, KF2, WF, S0, OA = 16, 48, 80, 112, 128, 136
    QF = WF
    AX = 152
    vFs, vU0, vU1, vSb0, vSb1, vTagP, vTagQ, vGb, vNrm, vM, vXh, vK0 = [f'v{i}' for i in range(140, 152)]
    vGa, vXr = vU0, vU1
    vGrp, vNq, vB2, vN = [f'v{i}' for i in range(AX + 4, AX + 8)]
    vZ = f'v{AX + 1}'
    sLd = 's53'
    sTag, sFF, sHi = 's6', 's7', 's45'
    WS = 's[8:11]'
    MK = [f's[{i}:{i + 1}]' for i in range(20, 36, 2)]
    v = lambda i, n=1: f'v{i}' if n == 1 else f'v[{i}:{i + n - 1}]'

    def rb(x):
        a(f'v_cvt_pk_bf16_f32 {x}, {x}, {x}\nv_lshlrev_b32 {x}, 16, {x}')

    def wait_landed(n):
        L, D = a.new('L_wl'), a.new('L_wd')
        a(f's_cmp_ge_i32 {sLd}, {n}\ns_cbranch_scc1 {D}')
        a.label(L)
        a(f'ds_read_b32 {t[7]}, {vL4} offset:{LANDED}')
        timeout()
        a(f'''s_waitcnt lgkmcnt(0)
            v_readfirstlane_b32 {sLd}, {t[7]}
            s_cmp_lt_i32 {sLd}, {n}
            s_cbranch_scc1 {L}''')
        a.label(D)

    def set_freed(n):
        a(f'v_mov_b32 {t[7]}, {n}\nds_write_b32 {vW4}, {t[7]} offset:{FREED}')

    def csync(k, reads='', spec=None):
        spec = cfg.spec if spec is None else spec
        L = a.new('L_cs')
        a(f'v_mov_b32 {t[7]}, {k}\nds_write_b32 {vW4}, {t[7]} offset:{FLAG}')
        a.label(L)
        a(f'ds_read_b32 {t[7]}, {vFl} offset:{FLAG}')
        if spec:
            a(reads)
        timeout()
        a(f'''s_waitcnt lgkmcnt(0)
            v_cmp_gt_u32 vcc, {k}, {t[7]}
            s_cbranch_vccnz {L}''')
        if not spec and reads:
            a(reads)
            a('s_waitcnt lgkmcnt(0)')

    def act_reads(base, n, dst):
        return '\n'.join(f'ds_read_b128 {v(dst + 4 * j, 4)}, {vAct} offset:{base + 256 * j}' for j in range(n))

    def tr_reads(addr, blocks, dst):
        for i, off in enumerate(blocks):
            a(f'ds_read_b64_tr_b16 {v(dst + 4 * i, 2)}, {addr} offset:{off}')
            a(f'ds_read_b64_tr_b16 {v(dst + 4 * i + 2, 2)}, {addr} offset:{off + 4096}')

    def mfma(d, A, B, first):
        a(f'v_mfma_f32_16x16x32_bf16 {v(d, 4)}, {v(A, 4)}, {v(B, 4)}, {"0" if first else v(d, 4)}')

    def publish4(d, soff, addr=vPub):
        a(f'v_bfi_b32 {v(d)}, {sFF}, {vTagP}, {v(d)}')
        a(f'v_bfi_b32 {v(d + 1)}, {sFF}, {vTagP}, {v(d + 1)}')
        a(f'buffer_store_dwordx4 {v(d, 4)}, {addr}, {WS}, {soff} offen sc1')

    def tag_check(mk, r, tg, two, i):
        if two:
            a(f'v_bitop3_b32 {t[6 + (i & 1)]}, {v(r)}, {v(r + 1)}, {tg} bitop3:0x7e')
            a(f'v_cmp_ne_u32_sdwa {mk}, {t[6 + (i & 1)]}, {vZ} src0_sel:BYTE_0 src1_sel:DWORD')
        else:
            a(f'v_cmp_ne_u32_sdwa {mk}, {v(r)}, {tg} src0_sel:WORD_0 src1_sel:WORD_0')

    def gather(loads, sleep=0, clean=True, light=None):
        L, D = a.new('L_g'), a.new('L_gd')
        if cfg.nocomm & 1:
            return
        for ld in loads:
            a(ld[0])
        a.label(L)
        a('s_waitcnt vmcnt(0)')
        if not cfg.nocomm & 4:
            for i, (tx, r, tg, two) in enumerate(loads):
                tag_check(MK[i], r, tg, two, i)
            if len(loads) == 1:
                a(f's_cmp_eq_u64 {MK[0]}, 0\ns_cbranch_scc1 {D}')
            else:
                a(f's_or_b64 vcc, {MK[0]}, {MK[1]}')
                for i in range(2, len(loads)):
                    a(f's_or_b64 vcc, vcc, {MK[i]}')
                a(f's_cbranch_scc0 {D}')
            timeout()
            if light is not None:
                H = a.new('L_gh')
                a(f's_wqm_b64 vcc, {MK[0]}\ns_cmp_eq_u64 vcc, -1\ns_cbranch_scc0 {H}')
                if light:
                    a(f's_sleep {light}')
                a(loads[0][0])
                a(f's_branch {L}')
                a.label(H)
            a(';nopad 1')
            if sleep:
                a(f's_sleep {sleep}')
            for i, ld in enumerate(loads):
                N = a.new('L_gn')
                a(f's_wqm_b64 exec, {MK[i]}')
                if len(loads) > 1:
                    a(f's_cbranch_execz {N}')
                a(ld[0])
                a.label(N)
            a('s_mov_b64 exec, -1')
            a(';nopad 0')
            a(f's_branch {L}')
            a.label(D)
        if clean:
            for tx, r, tg, two in loads:
                if two:
                    a(f'v_and_b32 {v(r)}, {sHi}, {v(r)}\nv_and_b32 {v(r + 1)}, {sHi}, {v(r + 1)}')
                else:
                    a(f'v_and_b32 {v(r)}, 0xffff0000, {v(r)}')

    def ld4(r, addr, soff, off=0):
        return (f'buffer_load_dwordx4 {v(r, 4)}, {addr}, {WS}, {soff} offen offset:{off} sc1', r, vTagQ, True)

    def act_pos(dst, k, b):
        a(f'''v_lshrrev_b32 {dst}, 5, {k}
            v_lshlrev_b32 {dst}, 8, {dst}
            v_bfe_u32 {t[6]}, {k}, 2, 2
            v_lshl_add_u32 {dst}, {t[6]}, 6, {dst}
            v_lshl_add_u32 {dst}, {b}, 4, {dst}
            v_bfe_u32 {t[6]}, {k}, 4, 1
            v_lshl_add_u32 {dst}, {t[6]}, 3, {dst}
            v_and_b32 {t[6]}, 3, {k}
            v_lshl_add_u32 {dst}, {t[6]}, 1, {dst}''')

    def swap_reduce4(*rs):
        for r in rs:
            a(f'v_permlane32_swap_b32 {v(r)}, {v(r + 2)}\nv_permlane32_swap_b32 {v(r + 1)}, {v(r + 3)}')
        for r in rs:
            a(f'v_add_f32 {v(r)}, {v(r)}, {v(r + 2)}\nv_add_f32 {v(r + 1)}, {v(r + 1)}, {v(r + 3)}')
        for r in rs:
            a(f'v_permlane16_swap_b32 {v(r)}, {v(r + 1)}')
        for r in rs:
            a(f'v_add_f32 {v(r)}, {v(r)}, {v(r + 1)}')

    def dpp(op, x, ctl):
        a(f'{op}_dpp {x}, {x}, {x} {ctl} row_mask:0xf bank_mask:0xf')

    def tree(r, steps):
        for st in steps:
            for i in range(st):
                a(f'v_add_f32 {v(r + i)}, {v(r + i)}, {v(r + i + st)}')

    def warm(r):
        if not cfg.warm:
            return
        a('s_mov_b64 exec, 0')
        for w in range(7):
            a(f's_cmp_eq_u32 {sW}, {w}\ns_cbranch_scc1 {r}_e{w}')
        a(f's_branch {r}_e7')
        a.label(f'{r}_ret')
        a('s_mov_b64 exec, -1')

    def wb(r):
        if cfg.warm:
            a(f';warm_begin {r}')

    def we(r):
        if cfg.warm:
            a(f';warm_end {r}')

    a.label('L_consumer')
    if DBG:
        for i in range(32):
            a(f's_mov_b32 s{64 + i}, 0')
    a(f'''s_sub_u32 {sW}, {sW}, 1
        s_mov_b32 {sLd}, 0
        s_movk_i32 {sFF}, 0xff
        s_movk_i32 {sHi}, 0xff00
        v_lshlrev_b32 {vL4}, 2, v0
        v_and_b32 {vFl}, 28, {vL4}
        s_lshl_b32 {T0}, {sW}, 2
        v_mov_b32 {vW4}, {T0}
        v_lshrrev_b32 {vGrp}, 4, v0
        v_and_b32 {vNq}, 3, v0
        v_bfe_u32 {vB2}, v0, 2, 2
        v_lshl_add_u32 {vN}, {vNq}, 2, {vGrp}''')
    a(f'''s_lshl_b32 {T0}, {sW}, 10
        v_lshl_add_u32 {t[2]}, v0, 4, {T0}
        s_lshl_b32 {T0}, {sXcd}, 8
        s_lshl_b32 {T1}, {sW}, 5
        s_add_u32 {T0}, {T0}, {T1}
        v_lshlrev_b32 {t[3]}, 11, {vB2}
        v_lshl_add_u32 {t[3]}, {vN}, 1, {t[3]}
        v_add_u32 {t[3]}, {T0}, {t[3]}
        s_lshr_b32 {T0}, {sW}, 1
        s_lshl_b32 {T0}, {T0}, 11
        s_and_b32 {T1}, {sW}, 1
        s_lshl_b32 {T1}, {T1}, 8
        s_add_u32 {T0}, {T0}, {T1}
        s_and_b32 {T1}, s2, 3
        s_lshl_b32 {T1}, {T1}, 9
        s_add_u32 {T0}, {T0}, {T1}
        v_add_u32 {t[4]}, {T0}, {vL4}
        s_waitcnt lgkmcnt(0)
        global_load_dwordx4 {v(KF, 4)}, {t[2]}, {sp(pX)}
        global_load_ushort {vXh}, {t[3]}, {sp(pX)}
        global_load_dword {v(KF + 4)}, {t[4]}, {sp(pC)}
        s_add_u32 s60, s{pWS}, {FP}
        s_addc_u32 s61, s{pWS + 1}, 0
        s_load_dwordx16 s[20:35], s[60:61], 0
        s_mov_b32 s8, s{pWS}
        s_mov_b32 s9, s{pWS + 1}
        s_mov_b32 s10, {WS_END}
        s_mov_b32 s11, 0x20000''')
    if cfg.l2code:
        a('s_getpc_b64 s[12:13]')
        a.label('L_pc')
        a(f'''s_mov_b32 s14, L_end-L_pc
            s_mov_b32 s15, 0x20000
            s_lshl_b32 {T0}, {sW}, 12
            v_lshlrev_b32 {t[5]}, 6, v0
            buffer_load_dword {v(KF + 5)}, {t[5]}, s[12:15], {T0} offen''')
    a(f'''v_lshrrev_b32 {t[0]}, 2, v0
        v_and_b32 {t[1]}, 7, {t[0]}
        v_lshlrev_b32 {t[1]}, 1, {t[1]}
        v_bfe_u32 {t[2]}, v0, 1, 1
        s_lshl_b32 {T0}, {sW}, 1
        v_or_b32 {t[2]}, {T0}, {t[2]}
        v_xor_b32 {t[2]}, {t[2]}, {t[1]}
        v_lshlrev_b32 {vTr}, 8, {t[0]}
        v_lshl_add_u32 {vTr}, {t[2]}, 4, {vTr}
        v_and_b32 {t[2]}, 1, v0
        v_lshl_add_u32 {vTr}, {t[2]}, 3, {vTr}''')
    a(f'''v_lshlrev_b32 {vAct}, 6, {vGrp}
        v_lshl_add_u32 {vAct}, {vNq}, 4, {vAct}
        v_lshlrev_b32 {vPub}, 4, {vGrp}
        v_lshl_add_u32 {vPub}, {vNq}, 6, {vPub}
        v_lshl_or_b32 {vPub}, {vB2}, 29, {vPub}
        v_and_b32 {t[2]}, 7, v0
        v_lshlrev_b32 {vP}, 7, {vGrp}
        v_lshl_add_u32 {vP}, {t[2]}, 4, {vP}
        v_lshlrev_b32 {t[2]}, 1, {t[2]}
        v_xor_b32 {t[2]}, {t[2]}, {vGrp}
        v_and_b32 {t[1]}, 15, v0
        v_lshlrev_b32 {vK0}, 8, {t[1]}
        v_lshl_add_u32 {vK0}, {t[2]}, 4, {vK0}''')
    if DBG:
        stamp('entry')
        a('s_mov_b32 s64, s96')
    stamp('start')
    a('s_barrier')
    a(f'''s_and_b32 {T0}, {sW}, 1
        s_lshl_b32 {T0}, {T0}, 7
        v_lshl_add_u32 {t[0]}, v0, 1, {T0}
        s_lshr_b32 {T0}, {sW}, 1
        v_mov_b32 {t[1]}, {T0}''')
    act_pos(t[2], t[0], t[1])
    a(f'''s_waitcnt vmcnt(0)
        v_lshlrev_b32 {t[0]}, 16, {v(KF + 4)}
        v_and_b32 {t[1]}, 0xffff0000, {v(KF + 4)}
        v_mul_f32 {t[3]}, {f32(-LOG2E)}, {t[0]}
        v_mul_f32 {t[4]}, {f32(-LOG2E)}, {t[1]}
        v_exp_f32 {t[3]}, {t[3]}
        v_exp_f32 {t[4]}, {t[4]}
        v_add_f32 {t[3]}, 1.0, {t[3]}
        v_add_f32 {t[4]}, 1.0, {t[4]}
        v_rcp_f32 {t[3]}, {t[3]}
        v_rcp_f32 {t[4]}, {t[4]}
        v_mul_f32 {t[0]}, {t[0]}, {t[3]}
        v_mul_f32 {t[1]}, {t[1]}, {t[4]}
        v_cvt_pk_bf16_f32 {t[0]}, {t[0]}, {t[1]}
        ds_write_b32 {t[2]}, {t[0]} offset:{ACT_A}''')
    sm, sq = t[0], t[1]
    for i in range(4):
        a(f'v_lshlrev_b32 {t[4]}, 16, {v(KF + i)}\nv_and_b32 {t[5]}, 0xffff0000, {v(KF + i)}')
        if i == 0:
            a(f'v_add_f32 {sm}, {t[4]}, {t[5]}\nv_mul_f32 {sq}, {t[4]}, {t[4]}')
        else:
            a(f'v_add_f32 {sm}, {sm}, {t[4]}\nv_fmac_f32 {sq}, {t[4]}, {t[4]}\nv_add_f32 {sm}, {sm}, {t[5]}')
        a(f'v_fmac_f32 {sq}, {t[5]}, {t[5]}')
    a(f'''v_permlane32_swap_b32 {t[0]}, {t[1]}
        v_add_f32 {t[0]}, {t[0]}, {t[1]}
        v_mov_b32 {t[1]}, {t[0]}
        v_permlane16_swap_b32 {t[0]}, {t[1]}
        v_add_f32 {t[0]}, {t[0]}, {t[1]}''')
    for r in (8, 4, 2, 1):
        dpp('v_add_f32', t[0], f'row_ror:{r}')
    a(f'''v_lshrrev_b32 {t[1]}, 5, v0
        v_lshlrev_b32 {t[1]}, 2, {t[1]}
        v_lshl_add_u32 {t[1]}, {vW4}, 1, {t[1]}
        ds_write_b32 {t[1]}, {t[0]} offset:{ST1}
        v_lshlrev_b32 {t[0]}, 4, {vB2}''')
    csync(1, f'ds_read_b128 {v(AX, 4)}, {t[0]} offset:{ST1}')
    a(f'''s_and_b32 s20, s20, {sFF}
        s_and_b32 s24, s24, {sFF}
        s_and_b32 s28, s28, {sFF}
        s_lshl_b32 s24, s24, 8
        s_lshl_b32 s28, s28, 16
        s_lshl_b32 s32, s32, 24
        s_or_b32 s20, s20, s24
        s_or_b32 s28, s28, s32
        s_or_b32 s20, s20, s28
        s_add_u32 {sTag}, s20, {TAGK}
        v_lshlrev_b32 {t[0]}, 3, {vGrp}
        v_lshlrev_b32 {t[1]}, 3, {vNq}
        v_alignbit_b32 {vTagP}, {sTag}, {sTag}, {t[0]}
        v_alignbit_b32 {vTagQ}, {sTag}, {sTag}, {t[1]}''')
    stamp('cs1')
    a('s_cmp_ge_u32 s2, 192\ns_cbranch_scc1 L_noA')
    a(act_reads(ACT_A, 8, S))
    a(f'v_add_u32 {t[0]}, {slot(N_A)}, {vTr}')
    a(f'''s_and_b32 {T0}, s2, 3
        s_mul_i32 {T0}, {T0}, 384
        s_lshr_b32 {T1}, s2, 2
        s_lshl3_add_u32 {T0}, {T1}, {T0}
        s_add_u32 {T0}, {T0}, {sW}
        s_lshl_b32 {T0}, {T0}, 8''')
    for hf in range(2):
        wait_landed(N_A + 4 * hf + 4)
        tr_reads(t[0], [8192 * (4 * hf + j) for j in range(4)], KF + 16 * hf)
        a('s_waitcnt lgkmcnt(0)')
        set_freed(N_A + 4 * hf + 4)
        for j in range(4 * hf, 4 * hf + 4):
            mfma(OA, KF + 4 * j, S + 4 * j, j == 0)
    assert MODP == 0
    publish4(OA, T0)
    stamp('A_pub')
    a.label('L_noA')
    sm, sq = t[0], t[1]
    a(f'''v_add_f32 {sm}, {v(AX)}, {v(AX + 2)}
        v_add_f32 {sq}, {v(AX + 1)}, {v(AX + 3)}
        v_mul_f32 {sm}, {f32(1 / 1024)}, {sm}
        v_mul_f32 {sq}, {f32(1 / 1024)}, {sq}
        v_fma_f32 {sq}, -{sm}, {sm}, {sq}
        v_max_f32 {sq}, 0, {sq}''')
    rb(sq)
    rb(sm)
    a(f'v_add_f32 {sq}, {f32(1e-5)}, {sq}')
    rb(sq)
    a(f'v_sqrt_f32 {sq}, {sq}')
    rb(sq)
    a(f'v_rcp_f32 {sq}, {sq}')
    a(f'v_lshlrev_b32 {vXh}, 16, {vXh}\nv_sub_f32 {vNrm}, {vXh}, {sm}')
    rb(vNrm)
    a(f'v_mul_f32 {vNrm}, {vNrm}, {sq}')
    rb(vNrm)
    a(f'v_add_u32 {t[0]}, {slot(N_Q)}, {vTr}')
    wait_landed(N_K)
    tr_reads(t[0], [8192 * j for j in range(4)], WF)
    a(f's_add_u32 s54, {sW}, {N_K}\ns_waitcnt lgkmcnt(0)')
    set_freed('s54')
    sLead = 's44'
    a(f'''s_cmp_lt_u32 s2, 192
        s_cselect_b32 {sLead}, 0, 8''')

    def pace(n):
        a(f's_add_u32 {T0}, {sLead}, {n}')
        wait_landed(T0)

    def k_pull(i, dst):
        a(f's_add_u32 {T0}, s54, 1')
        wait_landed(T0)
        a(f'''s_and_b32 {T0}, s54, 15
            s_lshl_b32 {T0}, {T0}, 13
            s_add_u32 {T0}, {T0}, {RING0}
            v_add_u32 {t[0]}, {T0}, {vK0}
            v_xor_b32 {t[1]}, 64, {t[0]}
            v_xor_b32 {t[2]}, 0x80, {t[0]}
            v_xor_b32 {t[3]}, 0xc0, {t[0]}''')
        for tt in range(2):
            for j in range(4):
                a(f'ds_read_b128 {v(dst + 16 * tt + 4 * j, 4)}, {t[j]} offset:{4096 * tt}')
        if i < 3:
            a(f's_add_u32 s54, s54, 8')
        else:
            a(f's_mov_b32 s54, {N_O}')
        a('s_waitcnt lgkmcnt(0)')
        set_freed('s54')

    vMod = v(AX)
    a(f'''v_mov_b32 {vZ}, 0
        v_mul_u32_u24 {vMod}, {384 * 256}, {vGrp}
        v_and_b32 {t[2]}, 15, v0
        v_lshl_add_u32 {vMod}, {t[2]}, 4, {vMod}
        s_lshl_b32 {T0}, {sW}, 4
        v_add_u32 {t[2]}, {T0}, {vN}''')
    act_pos(t[4], t[2], vB2)
    assert cfg.e1at <= 4
    pace(N_K + cfg.e1at)
    stamp('e1_go')
    G = KF2 + 16
    a(f'''s_lshl3_add_u32 {T1}, {sXcd}, {sW}
        s_lshl_b32 {T1}, {T1}, 8
        s_add_u32 {T2}, {T1}, {64 * 256}''')
    gather([ld4(G, vMod, T1), ld4(G + 4, vMod, T2)], sleep=cfg.fsleep)
    stamp('e1')
    swap_reduce4(G, G + 4)
    rb(v(G))
    rb(v(G + 4))
    a(f'v_add_f32 {v(G + 4)}, 1.0, {v(G + 4)}')
    rb(v(G + 4))
    a(f'v_mul_f32 {v(G + 4)}, {vNrm}, {v(G + 4)}')
    rb(v(G + 4))
    a(f'''v_add_f32 {v(G)}, {v(G)}, {v(G + 4)}
        v_cvt_pk_bf16_f32 {v(G)}, {v(G)}, {v(G)}
        ds_write_b16 {t[4]}, {v(G)} offset:{ACT_B}''')
    csync(2, act_reads(ACT_B, 4, KF2))
    for j in range(4):
        mfma(OA, WF + 4 * j, KF2 + 4 * j, j == 0)
    a(f'''s_lshl_b32 {T0}, {sXcd}, 8
        s_lshl3_add_u32 {T0}, {sJ}, {T0}
        s_add_u32 {T0}, {T0}, {sW}
        s_lshl_b32 {T0}, {T0}, 8
        s_add_u32 {T0}, {T0}, {QP}''')
    publish4(OA, T0)
    stamp('B_pub')
    warm('WS')
    KSRC = [KF, S, KF2, S]
    for i in range(cfg.npre):
        k_pull(i, KSRC[i])
    pace(N_K + cfg.e2at)
    stamp('e2_go')
    sP, sB, sG = 's55', 's56', 's57'
    a(f'''s_lshr_b32 {T0}, {sJ}, 4
        s_lshl1_add_u32 {sP}, {sXcd}, {T0}
        s_and_b32 {sB}, {sP}, 3
        s_lshr_b32 {sG}, {sP}, 2''')
    G = QF
    a(f'''s_lshl3_add_u32 {T0}, {sG}, {sW}
        s_lshl_b32 {T0}, {T0}, 11
        s_lshl_b32 {T1}, {sB}, 6
        s_add_u32 {T0}, {T0}, {T1}
        s_add_u32 {T0}, {T0}, {QP}
        s_add_u32 {T1}, {T0}, {4 * 65536}
        v_lshlrev_b32 {t[0]}, 16, {vGrp}
        v_lshl_add_u32 {t[0]}, {vB2}, 8, {t[0]}
        v_lshl_add_u32 {t[0]}, {vNq}, 4, {t[0]}''')
    gather([ld4(G, t[0], T0), ld4(G + 4, t[0], T0, 1024), ld4(G + 8, t[0], T1), ld4(G + 12, t[0], T1, 1024)], sleep=cfg.fsleep)
    stamp('e2')
    wb('WS')
    tree(G, (8,))
    swap_reduce4(G, G + 4)
    a(f'''v_cvt_pk_bf16_f32 {t[2]}, {v(G)}, {v(G + 4)}
        s_mul_i32 {T0}, {sW}, 272
        v_lshl_add_u32 {t[0]}, {vB2}, 4, {vN}
        v_lshl_add_u32 {t[0]}, {t[0]}, 1, {T0}
        ds_write_b16 {t[0]}, {t[2]} offset:{QB}
        ds_write_b16_d16_hi {t[0]}, {t[2]} offset:{QB + 128}
        v_mul_u32_u24 {t[0]}, 68, {vFl}
        v_lshl_add_u32 {t[0]}, {vGrp}, 4, {t[0]}''')
    csync(3, '\n'.join(f'ds_read_b128 {v(QF + 4 * j, 4)}, {t[0]} offset:{QB + 64 * j}' for j in range(4)))
    stamp('q_ready')
    SC = [S0, KF, KF + 8, KF + 16]
    for i in range(4):
        src = KSRC[i]
        if i >= cfg.npre:
            k_pull(i, src)
        for j in range(4):
            for tt in range(2):
                mfma(SC[i] + 4 * tt, src + 16 * tt + 4 * j, QF + 4 * j, j == 0)
        for r in range(0, 8, 2):
            x, y = v(SC[i] + r), v(SC[i] + r + 1)
            a(f'''v_cvt_pk_bf16_f32 {y}, {x}, {y}
                v_lshlrev_b32 {x}, 16, {y}
                v_and_b32 {y}, 0xffff0000, {y}
                v_mul_f32 {x}, {f32(128 ** -0.5)}, {x}
                v_mul_f32 {y}, {f32(128 ** -0.5)}, {y}
                v_cvt_pk_bf16_f32 {y}, {x}, {y}
                v_lshlrev_b32 {x}, 16, {y}
                v_and_b32 {y}, 0xffff0000, {y}''')
            if i == 0 and r == 0:
                a(f'v_max_f32 {vM}, {x}, {y}')
            else:
                a(f'v_max3_f32 {vM}, {vM}, {x}, {y}')
    stamp('qk_done')
    a(f'''v_mov_b32 {t[0]}, {vM}
        v_permlane32_swap_b32 {vM}, {t[0]}
        v_max_f32 {vM}, {vM}, {t[0]}
        v_mov_b32 {t[0]}, {vM}
        v_permlane16_swap_b32 {vM}, {t[0]}
        v_max_f32 {vM}, {vM}, {t[0]}
        v_lshlrev_b32 {t[1]}, 3, {vFl}
        v_add_u32 {t[2]}, {t[1]}, {vW4}
        ds_write_b32 {t[2]}, {vM} offset:{MX}''')
    csync(4, f'ds_read_b128 {v(KF2, 4)}, {t[1]} offset:{MX}\nds_read_b128 {v(KF2 + 4, 4)}, {t[1]} offset:{MX + 16}')
    a(f'''v_max3_f32 {vM}, {v(KF2)}, {v(KF2 + 1)}, {v(KF2 + 2)}
        v_max3_f32 {vM}, {vM}, {v(KF2 + 3)}, {v(KF2 + 4)}
        v_max3_f32 {vM}, {vM}, {v(KF2 + 5)}, {v(KF2 + 6)}
        v_max_f32 {vM}, {vM}, {v(KF2 + 7)}
        s_lshl_b32 {T0}, {sW}, 9
        v_add_u32 {t[3]}, {T0}, {vP}''')
    for i in range(4):
        for r in range(8):
            x = v(SC[i] + r)
            a(f'v_sub_f32 {x}, {x}, {vM}\nv_mul_f32 {x}, {f32(LOG2E)}, {x}\nv_exp_f32 {x}, {x}')
        for r in range(8):
            x = v(SC[i] + r)
            if i == 0 and r == 0:
                continue
            if i == 0 and r == 1:
                a(f'v_add_f32 {t[0]}, {v(SC[0])}, {x}')
            else:
                a(f'v_add_f32 {t[0]}, {t[0]}, {x}')
        for r in range(4):
            a(f'v_cvt_pk_bf16_f32 {v(KF2 + 4 * i + r)}, {v(SC[i] + 2 * r)}, {v(SC[i] + 2 * r + 1)}')
        a(f'ds_write_b128 {t[3]}, {v(KF2 + 4 * i, 4)} offset:{PB + 4096 * i}')
    a(f'''v_mov_b32 {t[4]}, {t[0]}
        v_permlane32_swap_b32 {t[0]}, {t[4]}
        v_add_f32 {t[0]}, {t[0]}, {t[4]}
        v_mov_b32 {t[4]}, {t[0]}
        v_permlane16_swap_b32 {t[0]}, {t[4]}
        v_add_f32 {t[0]}, {t[0]}, {t[4]}
        ds_write_b32 {t[2]}, {t[0]} offset:{LS}''')
    csync(5, f'ds_read_b128 {v(KF2, 4)}, {t[1]} offset:{LS}\nds_read_b128 {v(KF2 + 4, 4)}, {t[1]} offset:{LS + 16}')
    a(f's_cmp_lg_u32 {sW}, 0\ns_cbranch_scc1 L_noml')
    tree(KF2, (4, 2, 1))
    a(f'''v_bfi_b32 {v(KF2)}, {sFF}, {vTagQ}, {v(KF2)}
        v_bfi_b32 {v(KF2 + 1)}, {sFF}, {vTagQ}, {vM}
        s_and_b32 {T1}, {sJ}, 15
        s_lshl4_add_u32 {T0}, {sP}, {T1}
        s_lshl_b32 {T0}, {T0}, 6
        s_add_u32 {T0}, {T0}, {ML}
        v_lshlrev_b32 {t[0]}, 3, v0
        s_mov_b64 exec, 0xff
        buffer_store_dwordx2 {v(KF2, 2)}, {t[0]}, {WS}, {T0} offen sc1
        s_mov_b64 exec, -1''')
    a.label('L_noml')
    we('WS')
    stamp('p_ready')
    a(f'v_add_u32 {t[0]}, {slot(N_O)}, {vTr}')
    wait_landed(N_V)
    tr_reads(t[0], [8192 * j for j in range(4)], WF)
    a(f'''s_mov_b32 s54, {N_V}
        v_mov_b32 {v(OA)}, 0
        v_mov_b32 {v(OA + 1)}, 0
        v_mov_b32 {v(OA + 2)}, 0
        v_mov_b32 {v(OA + 3)}, 0''')

    def v_loop(end):
        L = a.new('L_v')
        a.label(L)
        a(f'''s_and_b32 {T1}, s54, 15
            s_lshl_b32 {T1}, {T1}, 13
            s_add_u32 {T1}, {T1}, {RING0}
            v_add_u32 {t[0]}, {T1}, {vTr}
            s_add_u32 s54, s54, 1
            ds_read_b128 {v(KF + 4, 4)}, {vP} offset:{PB}''')
        wait_landed('s54')
        tr_reads(t[0], [0], KF)
        a(f'''v_add_u32 {vP}, 512, {vP}
            v_mov_b32 {t[7]}, s54
            s_cmp_lt_u32 s54, {end}
            s_waitcnt lgkmcnt(0)''')
        mfma(OA, KF, KF + 4, False)
        a(f'ds_write_b32 {vW4}, {t[7]} offset:{FREED}\ns_cbranch_scc1 {L}')

    v_loop(N_V + cfg.preat)
    stamp('v_half')
    sKsE, sNsE, sNtF, sBF = 's58', 's59', 's60', 's61'
    a(f'''s_sub_u32 {T0}, {sJ}, 4
        s_and_b32 {sKsE}, {T0}, 3
        s_lshr_b32 {T0}, {T0}, 2
        s_lshl3_add_u32 {sNsE}, {T0}, {sXcd}
        s_lshr_b32 {T1}, {sJ}, 2
        s_lshl3_add_u32 {sNtF}, {sXcd}, {T1}
        s_and_b32 {sBF}, {sJ}, 3''')
    a(f'''s_lshl_b32 {T0}, {sP}, 10
        s_add_u32 {T0}, {T0}, {ML}
        v_lshlrev_b32 {t[0]}, 3, v0
        s_lshl2_add_u32 {T1}, {sNtF}, {sBF}
        s_lshl_b32 {T1}, {T1}, 6
        s_add_u32 {T1}, {T1}, {320 * 256}
        v_and_b32 {t[1]}, 0xffffff3f, {vMod}''')
    common = [(f'buffer_load_dwordx2 {v(KF + 8, 2)}, {t[0]}, {WS}, {T0} offen sc1', KF + 8, vTagQ, True),
              (f'buffer_load_dwordx2 {v(KF + 10, 2)}, {t[0]}, {WS}, {T0} offen offset:512 sc1', KF + 10, vTagQ, True),
              ld4(KF + 12, t[1], T1)]
    a('s_cmp_lt_u32 s2, 32\ns_cbranch_scc1 L_preR')
    a(f'''s_lshl3_add_u32 {T2}, {sKsE}, {sW}
        s_lshl_b32 {T2}, {T2}, 9
        s_add_u32 {T2}, {T2}, {192 * 256}
        s_add_u32 {T3}, {T2}, {64 * 256}''')
    gather(common + [ld4(S, vMod, T2), ld4(S + 4, vMod, T2, 256), ld4(S + 8, vMod, T3), ld4(S + 12, vMod, T3, 256)], sleep=cfg.fsleep)
    swap_reduce4(S, S + 4, S + 8, S + 12)
    for i, d in enumerate((vSb0, vSb1, vU0, vU1)):
        a(f'v_cvt_pk_bf16_f32 {d}, {v(S + 4 * i)}, {v(S + 4 * i)}\nv_lshlrev_b32 {d}, 16, {d}')
    for d in (vU0, vU1):
        a(f'v_add_f32 {d}, 1.0, {d}')
        rb(d)
    a('s_branch L_preF')
    a.label('L_preR')
    a(f'''s_lshl3_add_u32 {T2}, s2, {sW}
        s_lshr_b32 {T3}, {T2}, 2
        s_lshl_b32 {T3}, {T3}, 5
        s_and_b32 s12, {sW}, 3
        s_lshl_b32 s12, s12, 11
        s_add_u32 {T3}, {T3}, s12
        v_lshl_add_u32 {t[2]}, {vN}, 1, {T3}
        global_load_ushort {vXr}, {t[2]}, {sp(pX)}
        s_lshl_b32 {T2}, {T2}, 6
        s_add_u32 {T2}, {T2}, {128 * 256}''')
    gather(common + [ld4(S, t[1], T2)], sleep=cfg.fsleep)
    swap_reduce4(S)
    a(f'''v_cvt_pk_bf16_f32 {vGa}, {v(S)}, {v(S)}
        v_lshlrev_b32 {vGa}, 16, {vGa}
        v_lshlrev_b32 {vXr}, 16, {vXr}''')
    a.label('L_preF')
    swap_reduce4(KF + 12)
    a(f'v_cvt_pk_bf16_f32 {vGb}, {v(KF + 12)}, {v(KF + 12)}\nv_lshlrev_b32 {vGb}, 16, {vGb}')

    def red_hi(op, x):
        dpp(op, x, 'row_ror:8')
        a(f'''v_mov_b32 {t[4]}, {x}
            v_permlane16_swap_b32 {x}, {t[4]}
            {op} {x}, {x}, {t[4]}
            v_mov_b32 {t[4]}, {x}
            v_permlane32_swap_b32 {x}, {t[4]}
            {op} {x}, {x}, {t[4]}''')
    a(f'v_max_f32 {t[1]}, {v(KF + 9)}, {v(KF + 11)}')
    red_hi('v_max_f32', t[1])
    a(f'''v_sub_f32 {v(KF + 9)}, {v(KF + 9)}, {t[1]}
        v_sub_f32 {v(KF + 11)}, {v(KF + 11)}, {t[1]}
        v_sub_f32 {vM}, {vM}, {t[1]}
        v_mul_f32 {v(KF + 9)}, {f32(LOG2E)}, {v(KF + 9)}
        v_mul_f32 {v(KF + 11)}, {f32(LOG2E)}, {v(KF + 11)}
        v_mul_f32 {vM}, {f32(LOG2E)}, {vM}
        v_exp_f32 {v(KF + 9)}, {v(KF + 9)}
        v_exp_f32 {v(KF + 11)}, {v(KF + 11)}
        v_exp_f32 {vM}, {vM}
        v_mul_f32 {t[1]}, {v(KF + 8)}, {v(KF + 9)}
        v_fmac_f32 {t[1]}, {v(KF + 10)}, {v(KF + 11)}''')
    red_hi('v_add_f32', t[1])
    a(f'v_rcp_f32 {t[1]}, {t[1]}\nv_mul_f32 {vFs}, {vM}, {t[1]}')
    (vOpA, vE3A, vE3P, vL16, vSeg, vSegH, vX1A, vX1S, vEP0, vStW, vStR, vGA0, vGA1, vFA, vFP, vFTr, vOut) = [v(KF2 + i) for i in range(17)]
    sOpO, sE3O, sE3O2, sDpO = 's12', 's13', 's14', 's15'
    sSl = 's36'
    a(f'''s_lshl3_add_u32 {T0}, {sG}, {sW}
        s_lshl2_add_u32 {T0}, {T0}, {sB}
        s_and_b32 {T1}, {sJ}, 15
        s_lshl4_add_u32 {T0}, {T0}, {T1}
        s_lshl_b32 {T0}, {T0}, 9
        s_add_u32 {sOpO}, {T0}, {OP}
        v_lshlrev_b32 {t[0]}, 4, {vGrp}
        v_lshl_add_u32 {vOpA}, {vFl}, 4, {t[0]}
        v_and_b32 {t[0]}, 8, v0
        v_lshl_or_b32 {vOpA}, {t[0]}, 27, {vOpA}''')
    a(f'''s_lshr_b32 {T0}, {sJ}, 3
        s_lshl2_add_u32 {sSl}, {sXcd}, {T0}
        s_lshr_b32 {T1}, {sW}, 1
        s_lshl2_add_u32 {T0}, {sSl}, {T1}
        s_lshl_b32 {T0}, {T0}, 13
        s_and_b32 {T2}, {sW}, 1
        s_lshl_b32 {T2}, {T2}, 8
        s_add_u32 {T0}, {T0}, {T2}
        s_add_u32 {sE3O}, {T0}, {OP}
        s_add_u32 {sE3O2}, {sE3O}, 4096
        v_and_b32 {t[1]}, 15, v0
        v_lshlrev_b32 {vE3A}, 9, {vGrp}
        v_lshl_add_u32 {vE3A}, {t[1]}, 4, {vE3A}
        s_lshr_b32 {T2}, {T2}, 2
        v_lshl_add_u32 {t[1]}, {t[1]}, 2, {vGrp}
        v_add_u32 {t[1]}, {T2}, {t[1]}
        v_mov_b32 {t[2]}, {T1}''')
    act_pos(vE3P, t[1], t[2])
    a(f'''s_and_b32 {T0}, {sJ}, 7
        s_lshl3_add_u32 {T0}, {T0}, {sW}
        s_lshl_b32 {T0}, {T0}, 5
        s_add_u32 {T0}, {T0}, {sSl}
        s_lshl_b32 {T0}, {T0}, 8
        s_add_u32 {sDpO}, {T0}, {DP}''')
    a(f'''v_lshlrev_b32 {vL16}, 4, v0
        v_lshrrev_b32 {t[0]}, 2, v0
        v_lshlrev_b32 {vSeg}, 8, {t[0]}
        v_lshl_add_u32 {vSeg}, {vNq}, 4, {vSeg}
        v_and_b32 {vSegH}, 0x7ff, {vSeg}
        v_lshlrev_b32 {vX1A}, 4, {vGrp}
        v_lshl_add_u32 {vX1A}, {vNq}, 2, {vX1A}
        v_lshl_or_b32 {vX1S}, {vB2}, 29, {vX1A}
        s_lshl_b32 {T0}, {sBF}, 11
        s_lshl_b32 {T1}, {sNtF}, 5
        s_add_u32 {T0}, {T0}, {T1}
        v_lshl_add_u32 {vOut}, {vN}, 1, {T0}''')
    a(f'''s_lshl_b32 {T0}, {sW}, 5
        v_add_u32 {t[1]}, {T0}, {vN}''')
    act_pos(vEP0, t[1], vB2)
    a(f'''v_lshlrev_b32 {vStR}, 6, {vB2}
        v_lshl_add_u32 {vStW}, {vW4}, 1, {vStR}
        v_lshrrev_b32 {t[0]}, 5, v0
        v_lshl_add_u32 {vStW}, {t[0]}, 2, {vStW}
        s_lshr_b32 {T0}, {sW}, 2
        s_lshl_b32 {T1}, {T0}, 7
        v_xor_b32 {vGA0}, {T1}, {vTr}
        s_lshl_b32 {T1}, {T0}, 15
        s_add_u32 {T1}, {T1}, {slot(N_G)}
        v_add_u32 {vGA0}, {T1}, {vGA0}
        v_xor_b32 {vGA1}, 0x80, {vGA0}
        v_add_u32 {vFTr}, {slot(N_F)}, {vTr}''')
    a(f'''v_lshlrev_b32 {vFA}, 11, {vGrp}
        v_bfe_u32 {t[0]}, v0, 3, 1
        v_lshl_add_u32 {vFA}, {t[0]}, 10, {vFA}
        v_lshl_add_u32 {vFA}, {vFl}, 2, {vFA}
        s_lshr_b32 {T0}, {sW}, 1
        s_lshl_b32 {T0}, {T0}, 4
        v_add_u32 {t[1]}, {T0}, {vN}
        v_and_b32 {t[2]}, 1, {vB2}
        s_and_b32 {T0}, {sW}, 1
        s_lshl_b32 {T0}, {T0}, 1
        v_add_u32 {t[2]}, {T0}, {t[2]}''')
    act_pos(vFP, t[1], t[2])
    stamp('pre_done')
    warm('WT')
    v_loop(N_G)
    wb('WT')
    a(';tail_begin')
    stamp('v_done')
    for r in range(4):
        a(f'v_mul_f32 {v(OA + r)}, {vFs}, {v(OA + r)}')
    publish4(OA, sOpO, vOpA)
    if cfg.ackwait & 1:
        a('s_waitcnt vmcnt(0)')
    gather([ld4(KF + 4 * i, vE3A, sE3O if i < 2 else sE3O2, 2048 * (i & 1)) for i in range(4)], light=cfg.tsleep)
    stamp('e3')
    tree(KF, (8, 4))
    swap_reduce4(KF)
    a(f'''v_cvt_pk_bf16_f32 {v(KF)}, {v(KF)}, {v(KF)}
        ds_write_b16 {vE3P}, {v(KF)} offset:{ACT_D}''')
    csync(6, act_reads(ACT_D, 4, S))
    for j in range(4):
        mfma(OA, WF + 4 * j, S + 4 * j, j == 0)
    publish4(OA, sDpO)
    stamp('D_pub')
    a('s_cmp_ge_u32 s2, 32\ns_cbranch_scc1 L_E')
    a(f'''s_lshl3_add_u32 {T2}, s2, {sW}
        s_lshr_b32 {T0}, {T2}, 2
        s_lshl_b32 {T0}, {T0}, 13
        s_and_b32 {T1}, {sW}, 3
        s_lshl_b32 {T1}, {T1}, 6
        s_add_u32 {T0}, {T0}, {T1}
        s_add_u32 {T0}, {T0}, {DP}
        s_add_u32 {T1}, {T0}, 4096
        s_lshl_b32 {T2}, {T2}, 6
        s_add_u32 {T2}, {T2}, {X1}
        s_mov_b32 {T3}, 0xffff''')
    if cfg.ackwait & 2:
        a('s_waitcnt vmcnt(0)')
    gather([ld4(KF, vSeg, T0), ld4(KF + 4, vSeg, T1)])
    stamp('e4a')
    tree(KF, (4,))
    swap_reduce4(KF)
    dpp('v_add_f32', v(KF), 'row_ror:8')
    dpp('v_add_f32', v(KF), 'row_ror:4')
    a(f'''v_fma_f32 {v(KF)}, {vGa}, {v(KF)}, {vXr}
        v_cvt_pk_bf16_f32 {v(KF)}, {v(KF)}, {v(KF)}
        v_bfi_b32 {v(KF)}, {T3}, {vTagP}, {v(KF)}
        buffer_store_dword {v(KF)}, {vX1S}, {WS}, {T2} offen sc1''')
    stamp('R_pub')
    a('s_branch L_final')
    a.label('L_E')
    a(f'''s_lshr_b32 {T0}, {sW}, 2
        s_lshl2_add_u32 {T0}, {T0}, {N_U}''')
    wait_landed(T0)
    tr_reads(vGA0, [8192 * j for j in range(4)], KF)
    tr_reads(vGA1, [8192 * j for j in range(4)], KF + 16)
    a(f'''s_lshl_b32 {T0}, {sW}, 11
        s_add_u32 {T0}, {T0}, {X1}
        s_lshl3_add_u32 {T1}, {sKsE}, {sW}
        s_lshl_b32 {T1}, {T1}, 9
        s_add_u32 {T1}, {T1}, {X1}
        v_lshl_add_u32 {t[0]}, {vB2}, 6, {vX1A}''')
    if cfg.e4bat:
        wait_landed(cfg.e4bat)
    stamp('e4b_go')
    x0, x1 = S + 8, S + 9
    gather([(f'buffer_load_dword {v(x0)}, {t[0]}, {WS}, {T1} offen sc1', x0, vTagP, False),
            (f'buffer_load_dword {v(x1)}, {t[0]}, {WS}, {T1} offen offset:256 sc1', x1, vTagP, False),
            ld4(S, vL16, T0)[:3] + (False,), ld4(S + 4, vL16, T0, 1024)[:3] + (False,)], clean=False, light=cfg.tsleep)
    stamp('e4b')
    sm, sq = t[0], t[1]
    for i in range(10):
        a(f'v_and_b32 {v(S + i)}, 0xffff0000, {v(S + i)}')
    a(f'v_add_f32 {sm}, {v(S)}, {v(S + 1)}\nv_mul_f32 {sq}, {v(S)}, {v(S)}\nv_fmac_f32 {sq}, {v(S + 1)}, {v(S + 1)}')
    for i in range(2, 8):
        a(f'v_add_f32 {sm}, {sm}, {v(S + i)}\nv_fmac_f32 {sq}, {v(S + i)}, {v(S + i)}')
    a(f'''v_permlane32_swap_b32 {sm}, {sq}
        v_add_f32 {sm}, {sm}, {sq}
        v_mov_b32 {sq}, {sm}
        v_permlane16_swap_b32 {sm}, {sq}
        v_add_f32 {sm}, {sm}, {sq}''')
    dpp('v_add_f32', sm, 'quad_perm:[1,0,3,2]')
    dpp('v_add_f32', sm, 'quad_perm:[2,3,0,1]')
    a(f'ds_write_b32 {vStW}, {sm} offset:{ST2}')
    csync(7, '\n'.join(f'ds_read_b128 {v(S + 12 + 4 * i, 4)}, {vStR} offset:{ST2 + 16 * i}' for i in range(4)))
    tree(S + 12, (8, 4, 2))
    sm, sq = v(S + 12), v(S + 13)
    a(f'''v_mul_f32 {sm}, {f32(1 / 1024)}, {sm}
        v_mul_f32 {sq}, {f32(1 / 1024)}, {sq}
        v_fma_f32 {sq}, -{sm}, {sm}, {sq}
        v_max_f32 {sq}, 0, {sq}
        v_add_f32 {sq}, {f32(1e-5)}, {sq}
        v_rsq_f32 {sq}, {sq}
        v_sub_f32 {v(x0)}, {v(x0)}, {sm}
        v_sub_f32 {v(x1)}, {v(x1)}, {sm}
        v_mul_f32 {v(x0)}, {v(x0)}, {vU0}
        v_mul_f32 {v(x1)}, {v(x1)}, {vU1}
        v_fma_f32 {v(x0)}, {v(x0)}, {sq}, {vSb0}
        v_fma_f32 {v(x1)}, {v(x1)}, {sq}, {vSb1}
        v_cvt_pk_bf16_f32 {t[0]}, {v(x0)}, {v(x1)}
        ds_write_b16 {vEP0}, {t[0]} offset:{ACT_E}
        ds_write_b16_d16_hi {vEP0}, {t[0]} offset:{ACT_E + 8}''')
    csync(8, act_reads(ACT_E, 8, S))
    for j in range(8):
        mfma(OA, KF + 4 * j, S + 4 * j, j == 0)
    a(f'''s_lshl_b32 {T1}, {sNsE}, 13
        s_add_u32 {T1}, {T1}, {EP}
        s_lshl3_add_u32 {T0}, {sKsE}, {sW}
        s_lshl_b32 {T0}, {T0}, 8
        s_add_u32 {T0}, {T0}, {T1}''')
    publish4(OA, T0)
    stamp('E_pub')
    a(f'''s_lshl_b32 {T0}, {sW}, 7
        s_add_u32 {T1}, {T1}, {T0}''')
    wait_landed(N_END)
    tr_reads(vFTr, [8192 * j for j in range(4)], WF)
    if cfg.ackwait & 4:
        a('s_waitcnt vmcnt(0)')
    gather([ld4(KF, vFA, T1)])
    stamp('e4c')
    swap_reduce4(KF)
    x, u = v(KF), v(KF + 1)
    c1 = -2.0 * 0.7978845608028654 * LOG2E
    a(f'''v_mul_f32 {t[1]}, {x}, {x}
        v_mov_b32 {t[2]}, {f32(c1)}
        v_fmac_f32 {t[2]}, {f32(c1 * 0.044715)}, {t[1]}
        v_mul_f32_dpp {u}, {x}, {x} row_ror:8 row_mask:0xf bank_mask:0xf
        v_mul_f32 {t[2]}, {t[2]}, {x}
        v_exp_f32 {t[2]}, {t[2]}
        v_add_f32 {t[2]}, 1.0, {t[2]}
        v_rcp_f32 {t[2]}, {t[2]}
        v_mul_f32 {x}, {u}, {t[2]}
        v_cvt_pk_bf16_f32 {x}, {x}, {x}
        s_mov_b32 exec_lo, 0x00ff00ff
        s_mov_b32 exec_hi, 0x00ff00ff
        ds_write_b16 {vFP}, {x} offset:{ACT_F}
        s_mov_b64 exec, -1''')
    csync(9, act_reads(ACT_F, 2, S))
    for j in range(2):
        for hf in range(2):
            mfma(KF + 4 * hf, WF + 8 * hf + 4 * j, S + 4 * j, j == 0)
    a(f'''s_lshl4_add_u32 {T0}, {sKsE}, {sW}
        s_mul_i32 {T0}, {T0}, 56
        s_add_u32 {T0}, {T0}, {sNsE}
        s_lshl_b32 {T0}, {T0}, 8
        s_add_u32 {T0}, {T0}, {FP}
        s_add_u32 {T1}, {T0}, {8 * 56 * 256}''')
    publish4(KF, T0)
    publish4(KF + 4, T1)
    stamp('F_pub')
    a.label('L_final')
    a(f'''s_cmp_lg_u32 {sW}, 0
        s_cbranch_scc1 L_end
        s_mul_i32 {T0}, {sNtF}, {56 * 256}
        s_lshl_b32 {T1}, {sBF}, 6
        s_add_u32 {T0}, {T0}, {T1}
        s_add_u32 {T0}, {T0}, {FP}
        s_add_u32 {T1}, {T0}, 4096
        s_add_u32 {T2}, {T0}, 8192
        s_add_u32 {T3}, {T0}, 12288
        s_lshl2_add_u32 s12, {sNtF}, {sBF}
        s_lshl_b32 s12, s12, 6
        s_add_u32 s12, s12, {X1}''')
    if cfg.ackwait & 8:
        a('s_waitcnt vmcnt(0)')
    gather([ld4(S, vSeg, T0), ld4(S + 4, vSeg, T1), ld4(S + 8, vSeg, T2), ld4(S + 12, vSegH, T3),
            (f'buffer_load_dword {v(S + 16)}, {vX1A}, {WS}, s12 offen sc1', S + 16, vTagP, False)])
    stamp('e5')
    for i in range(4):
        a(f'v_add_f32 {v(S + i)}, {v(S + i)}, {v(S + 4 + i)}\nv_fmac_f32 {v(S + 8 + i)}, 0.5, {v(S + 12 + i)}')
    for i in range(4):
        a(f'v_add_f32 {v(S + i)}, {v(S + i)}, {v(S + 8 + i)}')
    swap_reduce4(S)
    dpp('v_add_f32', v(S), 'row_ror:8')
    dpp('v_add_f32', v(S), 'row_ror:4')
    a(f'''v_fma_f32 {v(S)}, {vGb}, {v(S)}, {v(S + 16)}
        v_cvt_pk_bf16_f32 {v(S)}, {v(S)}, {v(S)}
        s_mov_b32 exec_lo, 0x000f000f
        s_mov_b32 exec_hi, 0x000f000f
        global_store_short {vOut}, {v(S)}, {sp(pOUT)}''')
    we('WT')
    stamp('out')
    if cfg.probe:
        i = stamp_names.index(cfg.probe)
        if cfg.probewg >= 0:
            a(f's_cmp_lg_u32 s2, {cfg.probewg}\ns_cbranch_scc1 L_noprobe')
        a(f'''s_sub_u32 {T0}, s{64 + i}, s64
            s_mul_i32 {T0}, {T0}, 10
            s_add_u32 {T0}, {T0}, 10000''')
        if cfg.dirty:
            a(f's_sub_u32 {T2}, {T0}, 400')
            a.label('L_probe0')
            a(f'''s_memrealtime s[62:63]
                s_waitcnt lgkmcnt(0)
                s_sub_u32 {T1}, s62, s64
                s_cmp_lt_u32 {T1}, {T2}
                s_cbranch_scc1 L_probe0
                s_mov_b64 exec, -1
                s_mul_i32 {T1}, s2, {cfg.dirty * 1024}
                s_add_u32 {T1}, {T1}, {16 << 20}
                v_lshlrev_b32 v9, 4, v0
                v_add_u32 v9, {T1}, v9''')
            for q in range(cfg.dirty):
                a(f'global_store_dwordx4 v9, v[16:19], {sp(pWS)}\nv_add_u32 v9, 0x400, v9')
        a.label('L_probe')
        a(f'''s_memrealtime s[62:63]
            s_waitcnt lgkmcnt(0)
            s_sub_u32 {T1}, s62, s64
            s_cmp_lt_u32 {T1}, {T0}
            s_cbranch_scc1 L_probe''')
        a.label('L_noprobe')
    if DBG:
        a(f's_lshl_b32 {T1}, s2, 1')
        dump_stamps(T1)
    a.label('L_abort')
    a.label('L_end')
    a('s_endpgm')

    cut = a.lines.index(';tail_begin')
    fl = {0: ' sc1', 1: ' sc1 nt', 2: ''}
    for i, x in enumerate(a.lines):
        if x.startswith('buffer_store') and x.endswith(' sc1'):
            a.lines[i] = x[:-4] + fl[cfg.stf if i < cut else cfg.stt]
        if x.startswith('buffer_load') and x.endswith(' sc1'):
            a.lines[i] = x[:-4] + fl[cfg.ldf if i < cut else cfg.ldt]
    a.lines.pop(cut)
    if cfg.nocomm & 8:
        a.lines = [x for i, x in enumerate(a.lines) if not (i >= cut and x.startswith(('buffer_store', 'buffer_load')))]
    if cfg.nocomm & 2:
        a.lines = [x for x in a.lines if not (x.startswith('buffer_store') or x.startswith('s_atomic'))]
    body = a.finish(step=cfg.padstep)
    print('code bytes', a.code_bytes, 'pads', a.npads, file=sys.stderr)
    hdr = open('cdna_kernels/' + NAME + '.s.ref').read().split('; Override launch')[0]
    txt = hdr + f'''; Persistent fused kernel: one workgroup per CU, 1 LDS-DMA loader wave + 8 consumer waves.
; @launch grid=(256,1,1) block=(576,1,1) lds={LDS_BYTES}
.amdgcn_target "amdgcn-amd-amdhsa--gfx950"
.text
.globl {NAME}_kernel
.p2align 8
.type {NAME}_kernel,@function
{NAME}_kernel:
{body}.section .rodata,"a"
.p2align 6
.amdhsa_kernel {NAME}_kernel
  .amdhsa_next_free_vgpr 160
  .amdhsa_next_free_sgpr 102
  .amdhsa_accum_offset 160
  .amdhsa_group_segment_fixed_size 0
  .amdhsa_kernarg_size 112
  .amdhsa_user_sgpr_count 2
  .amdhsa_user_sgpr_kernarg_segment_ptr 1
  .amdhsa_system_sgpr_workgroup_id_x 1
.end_amdhsa_kernel
'''
    return txt, dict(consumer=list(stamp_names), loader=loader_names)


def parser():
    p = argparse.ArgumentParser()
    p.add_argument('-o', dest='out', default='out.s')
    p.add_argument('--debug', type=int, default=0)
    for k, d in dict(wmain=22, wtail=22, fsleep=8, tsleep=2, e1at=4, e2at=16, npre=2, preat=16, warm=0, l2code=0, padstep=64,
                     nocomm=0, dirty=0, stf=0, stt=0, ldf=0, ldt=0, trace=0, ackwait=14, spec=0, e4bat=0).items():
        p.add_argument('--' + k, type=int, default=d)
    p.add_argument('--probe', default='')
    p.add_argument('--probewg', type=int, default=40)
    p.add_argument('--timeout', type=int, default=1 << 20)
    return p


if __name__ == '__main__':
    cfg = parser().parse_args()
    txt, names = build(cfg)
    open(cfg.out, 'w').write(txt)
    import json
    json.dump(names, open(cfg.out + '.json', 'w'))
```

```python
import sys, struct, argparse
from asmlib import Asm

NAME = 'adaLN_cond__gqa_block_cached__geglu_ffn__decode'


def f32(x):
    return '0x%08x' % struct.unpack('<I', struct.pack('<f', x))[0]


LOG2E = 1.4426950408889634

PO, PX, PG = 64, 64, 64
GG = 0
HH = GG + 224 * 4 * 128
US = HH + 16384
QQ = US + 32768
OO = QQ + 65536
X1 = OO + 32 * 32 * 128
CTR = X1 + 256 * 128
GEND = CTR + 8 * 256
LOC = 512 << 10
LSTRIDE = 256 << 10
LQ = 0
LO = 0
LE = 0
LD = 128 << 10
LF = LD
LM = 192 << 10
LL = 240 << 10
HELLO = 244 << 10
LX = 245 << 10
STAMPS = 8 << 20
TAGK, TAGC = 0x3525, 0x4B13

LANDED = 0
FREED = 256
MODE = 288
LOCAL = 292
FLAG = 320
ST1 = 384
ST2 = 512
MX = 768
LS = 1024
ACT_A = 2048
ACT_B = 4096
ACT_D = 5120
ACT_E = 6144
ACT_F = 8192
QB = 9216
PB = 16384
RING0 = 32768
LDS_BYTES = 163840

N_A, N_Q, N_K, N_O, N_V, N_G, N_U, N_F, N_END = 0, 8, 12, 44, 48, 80, 84, 88, 92


def slot(n):
    return RING0 + (n & 15) * 8192


def build(cfg):
    a = Asm()
    DBG = cfg.debug
    PO_, PX_, PG_ = cfg.po, cfg.px, cfg.pg
    lg = lambda x: x.bit_length() - 1
    NT = '' if cfg.early else ' nt'

    pX, pK, pV, pWQ, pWO, pG, pU, pD, pC, pWM, pOUT, pDBG, pWS = 16, 18, 20, 22, 24, 28, 30, 32, 34, 36, 38, 40, 42
    sp = lambda p: f's[{p}:{p + 1}]'
    sW, sTO = 's3', 's48'
    sC, sJ = 's4', 's5'
    T0, T1, T2, T3 = 's49', 's50', 's51', 's52'
    stamp_names = []
    ool = []

    def stamp(name):
        if not DBG or (cfg.only and name not in cfg.only.split(',') and name != 'entry'):
            return
        if name not in stamp_names:
            stamp_names.append(name)
        i = stamp_names.index(name)
        assert i < 32
        a(f's_memrealtime s[62:63]\ns_waitcnt lgkmcnt(0)\ns_mov_b32 s{64 + i}, s62')

    def dump_stamps(row):
        a('s_mov_b64 exec, -1')
        for i in range(32):
            a(f'v_writelane_b32 v8, s{64 + i}, {i}')
        a(f'''s_lshl_b32 {T0}, {row}, 7
            s_add_u32 {T0}, {T0}, {STAMPS}
            v_lshlrev_b32 v9, 2, v0
            v_add_u32 v9, {T0}, v9
            s_mov_b32 exec_hi, 0
            global_store_dword v9, v8, {sp(pWS)}''')

    def timeout():
        a(f's_sub_u32 {sTO}, {sTO}, 1\ns_cbranch_scc1 L_end')

    if DBG:
        a('s_memrealtime s[96:97]')
    a(f'''s_cmp_ge_u32 s2, 256
        s_cbranch_scc1 L_end
        s_load_dwordx16 s[16:31], s[0:1], 0
        s_load_dwordx8 s[32:39], s[0:1], 64
        s_load_dwordx4 s[40:43], s[0:1], 96
        v_lshrrev_b32 v1, 6, v0
        v_and_b32 v0, 63, v0
        v_readfirstlane_b32 {sW}, v1
        s_and_b32 {sC}, s2, 7
        s_lshr_b32 {sJ}, s2, 3
        s_mov_b32 {sTO}, {cfg.timeout}
        s_cmp_lg_u32 {sW}, 0
        s_cbranch_scc1 L_notloader''')

    sOff, sStep, sJump, sEnd, sN, sLds, sPub = 's12', 's13', 's14', 's15', 's44', 's45', 's53'
    vO0, vO1, vF, vFa, vL4, vR, vC0, vC1, vT, vMd = 'v1', 'v2', 'v3', 'v4', 'v5', 'v6', 'v7', 'v10', 'v11', 'v14'
    if DBG:
        for i in range(32):
            a(f's_mov_b32 s{64 + i}, 0')
    a(f'''s_setprio 3
        v_lshlrev_b32 {vL4}, 2, v0
        v_mov_b32 {vF}, 0
        ds_write_b32 {vL4}, {vF} offset:{LANDED}
        ds_write_b32 {vL4}, {vF} offset:{FREED}
        s_cmp_ge_u32 s2, 192
        s_cselect_b32 {T0}, {cfg.mode0n}, {cfg.mode0a}
        v_mov_b32 {vMd}, {T0}
        ds_write_b32 {vF}, {vMd} offset:{MODE}
        v_and_b32 {vFa}, 28, {vL4}
        v_lshrrev_b32 {vR}, 4, v0
        v_and_b32 {vC0}, 15, v0
        v_lshlrev_b32 {vT}, 1, {vR}
        v_xor_b32 {vC0}, {vC0}, {vT}
        v_lshlrev_b32 {vC0}, 4, {vC0}
        v_xor_b32 {vC1}, 0x80, {vC0}
        s_mov_b32 s11, 0x20000
        s_mov_b32 {sPub}, 0
        s_lshl_b32 s57, {sC}, 8''')

    def seg(ptr, nbytes, pitch, jump=None, fold=False):
        a(f'''s_mov_b32 s8, s{ptr}
            s_mov_b32 s9, s{ptr + 1}
            s_mov_b32 s10, {nbytes}
            s_mov_b32 {sStep}, {4 * pitch}
            s_mov_b32 {sJump}, {jump if jump is not None else 4 * pitch}
            v_mul_u32_u24 {vT}, {pitch}, {vR}''')
        if not fold:
            a(f'v_add_u32 {vO0}, {vT}, {vC0}\nv_add_u32 {vO1}, {vT}, {vC1}')
        else:
            for vO, vC in ((vO0, vC0), (vO1, vC1)):
                a(f'''v_and_b32 v12, 0x80, {vC}
                    v_mul_u32_u24 v12, {pitch}, v12
                    v_and_b32 v13, 0x70, {vC}
                    v_add3_u32 {vO}, {vT}, v12, v13''')

    def run(end, which):
        a(f's_mov_b32 {sEnd}, {end}\ns_call_b64 s[46:47], L_loop{which}')

    def drain():
        for k in (3, 2, 1, 0):
            a(f'''s_sub_u32 {T0}, {sN}, {k}
                s_max_i32 {sPub}, {sPub}, {T0}
                v_mov_b32 {vT}, {sPub}
                s_waitcnt vmcnt({8 * k})
                ds_write_b32 {vL4}, {vT} offset:{LANDED}''')

    def hold(n):
        drain()
        L = a.new('L_hold')
        a.label(L)
        a(f'ds_read_b32 {vF}, {vFa} offset:{FREED}')
        timeout()
        a(f'''s_waitcnt lgkmcnt(0)
            v_cmp_gt_i32 vcc, {n}, {vF}
            s_cbranch_vccnz {L}''')

    def q_off():
        a(f'''s_and_b32 {T0}, {sJ}, 7
            s_lshl_b32 {T0}, {T0}, 20
            s_lshr_b32 {T1}, {sJ}, 3
            s_lshl2_add_u32 {T1}, {sC}, {T1}
            s_lshl_b32 {T1}, {T1}, 8
            s_add_u32 {sOff}, {T0}, {T1}''')

    a(f's_cmp_ge_u32 s2, 192\ns_cbranch_scc1 L_ld_noA')
    a(f'''s_and_b32 {T0}, {sJ}, 3
        s_mul_i32 {T0}, {T0}, {256 * 12288}
        s_lshr_b32 {T1}, {sJ}, 2
        s_lshl_b32 {T1}, {T1}, 11
        s_add_u32 {T0}, {T0}, {T1}
        s_add_u32 {sOff}, {T0}, s57
        s_mov_b32 {sN}, {N_A}
        s_waitcnt lgkmcnt(0)''')
    seg(pWM, 1024 * 12288, 12288)
    run(N_A + 2, 'M')
    a('s_waitcnt lgkmcnt(0)\ns_barrier')
    run(N_Q, 'M')
    q_off()
    seg(pWQ, 1024 * 8192, 8192)
    a('s_branch L_ld_q')
    a.label('L_ld_noA')
    q_off()
    a(f's_mov_b32 {sN}, {N_Q}\ns_waitcnt lgkmcnt(0)')
    seg(pWQ, 1024 * 8192, 8192)
    run(N_Q + 1, 'M')
    a('s_waitcnt lgkmcnt(0)\ns_barrier')
    a.label('L_ld_q')
    run(N_K, 'M')
    stamp('ld_q_issued')
    a(f'''s_lshr_b32 {T0}, {sJ}, 4
        s_lshl1_add_u32 {T0}, {sC}, {T0}
        s_and_b32 {T1}, {T0}, 3
        s_lshr_b32 {T0}, {T0}, 2
        s_lshl2_add_u32 {T0}, {T1}, {T0}
        s_lshl_b32 {T0}, {T0}, 22
        s_and_b32 {T1}, {sJ}, 15
        s_lshl_b32 {T1}, {T1}, 18
        s_add_u32 s54, {T0}, {T1}
        s_mov_b32 {sOff}, s54''')
    seg(pK, 1 << 26, 256)
    run(N_O, 'M')
    stamp('ld_k_issued')
    a(f'''s_lshr_b32 {T1}, {sJ}, 3
        s_lshl_b32 {T1}, {T1}, 21
        s_and_b32 {T0}, {sJ}, 7
        s_lshl_b32 {T0}, {T0}, 15
        s_add_u32 {T0}, {T0}, {T1}
        s_add_u32 {sOff}, {T0}, s57''')
    seg(pWO, 4096 * 2048, 2048, jump=(128 - 12) * 2048)
    run(N_V, 'M')
    a(f's_mov_b32 {sOff}, s54')
    seg(pV, 1 << 26, 256)
    run(N_G, 'M')
    stamp('ld_v_issued')
    a('s_cmp_lt_u32 s2, 32\ns_cbranch_scc1 L_ld_drain')
    a(f'''s_sub_u32 s55, {sJ}, 4
        s_and_b32 {T0}, s55, 3
        s_mul_i32 {T0}, {T0}, {256 * 7168}
        s_lshr_b32 {T1}, s55, 2
        s_lshl3_add_u32 {T1}, {T1}, {sC}
        s_lshl_b32 {T1}, {T1}, 7
        s_add_u32 s54, {T0}, {T1}
        s_mov_b32 {sOff}, s54''')
    seg(pG, 1024 * 7168, 7168, fold=True)
    if cfg.hold & 1:
        hold(N_G + 1)
    run(N_U, 'T')
    a(f's_mov_b32 {sOff}, s54\ns_mov_b32 s8, s{pU}\ns_mov_b32 s9, s{pU + 1}')
    if cfg.hold & 2:
        hold(N_G + 2)
    run(N_F, 'T')
    stamp('ld_u_issued')
    a(f's_lshl_b32 {T0}, s55, 18\ns_add_u32 {sOff}, {T0}, s57')
    seg(pD, 3584 * 2048, 2048)
    if cfg.hold & 4:
        hold(N_G + 2)
    if cfg.hold & 8:
        hold(N_G + 3)
    run(N_END, 'T')
    a.label('L_ld_drain')
    drain()
    stamp('ld_done')
    if DBG:
        a(f's_lshl_b32 {T1}, s2, 1\ns_add_u32 {T1}, {T1}, 1')
        a(f'''s_lshl_b32 {T0}, s2, 9
            s_add_u32 {T0}, {T0}, {STAMPS + (1 << 20)}
            v_add_u32 v9, {T0}, {vL4}
            global_store_dword v9, v20, {sp(pWS)}
            global_store_dword v9, v21, {sp(pWS)} offset:256''')
        dump_stamps(T1)
    loader_names = list(stamp_names)
    a('s_endpgm')

    def loader_loop(which, Ws):
        a.label(f'L_loop{which}')
        a(f'''s_waitcnt lgkmcnt(0)
            s_sub_i32 {T0}, {sN}, 16
            v_cmp_ge_i32 vcc, {T0}, {vF}
            s_and_b32 {sLds}, {sN}, 15
            s_lshl_b32 {sLds}, {sLds}, 13
            s_cbranch_vccnz L_stall{which}''')
        a.label(f'L_go{which}')
        if DBG and cfg.trace:
            a(f'''s_memrealtime s[62:63]
                s_mov_b32 m0, {sN}
                s_waitcnt lgkmcnt(0)
                s_cmp_ge_u32 {sN}, 64
                s_cbranch_scc1 L_tr{which}
                v_writelane_b32 v20, s62, m0''')
            a.label(f'L_tr{which}')
            a('v_writelane_b32 v21, s62, m0')
        if len(Ws) > 1:
            a(f'v_readfirstlane_b32 {T1}, {vMd}')
            for m in range(1, len(Ws)):
                a(f's_cmp_eq_u32 {T1}, {m}\ns_cbranch_scc1 L_body{which}{m}')
        for m, W in enumerate(Ws):
            assert W % 2 == 0 and W <= 32
            a.label(f'L_body{which}{m}')
            for o in range(8):
                a(f's_add_u32 m0, {sLds}, {RING0 + o * 1024}')
                if o == 0:
                    a(f'ds_read_b32 {vF}, {vFa} offset:{FREED}')
                else:
                    a(f's_add_u32 {sOff}, {sOff}, {sJump if o == 4 else sStep}')
                a(f'buffer_load_dwordx4 {vO1 if o & 1 else vO0}, s[8:11], {sOff} offen nt lds')
                if o == 7 and len(Ws) > 1:
                    a(f'ds_read_b32 {vMd}, {vFa} offset:{MODE}')
                if o & 1:
                    pub = (o + 3 - W) % 8 == 0
                    if pub:
                        a(f'''s_add_i32 {T0}, {sN}, {(o + 3 - W) // 8}
                            s_max_i32 {sPub}, {sPub}, {T0}
                            v_mov_b32 {vT}, {sPub}''')
                    a(f's_waitcnt vmcnt({W - 2})')
                    if pub:
                        a(f'ds_write_b32 {vL4}, {vT} offset:{LANDED}')
            a(f'''s_add_u32 {sOff}, {sOff}, {sJump}
                s_add_u32 {sN}, {sN}, 1
                s_cmp_lt_u32 {sN}, {sEnd}
                s_cbranch_scc1 L_loop{which}
                s_setpc_b64 s[46:47]''')
        a.label(f'L_stall{which}')
        a(f'ds_read_b32 {vF}, {vFa} offset:{FREED}')
        timeout()
        a(f'''s_waitcnt lgkmcnt(0)
            v_cmp_ge_i32 vcc, {T0}, {vF}
            s_cbranch_vccnz L_stall{which}
            s_branch L_go{which}''')

    loader_loop('M', [cfg.wmain, cfg.wslow, cfg.wfast])
    loader_loop('T', [cfg.wtail])

    sTag = 's6'
    WS, WL = 's[8:11]', 's[12:15]'
    a.label('L_notloader')
    assert GG == 0
    a(f'''s_lshl_b32 {T0}, {sC}, {lg(LSTRIDE)}
        s_add_u32 {T0}, {T0}, {LOC}
        s_mov_b32 s10, {GEND}
        s_mov_b32 s11, 0x20000
        s_mov_b32 s14, {LSTRIDE}
        s_mov_b32 s15, 0x20000
        s_waitcnt lgkmcnt(0)
        s_load_dword {sTag}, {sp(pWS)}, 0
        s_mov_b32 s8, s{pWS}
        s_mov_b32 s9, s{pWS + 1}
        s_add_u32 s12, s{pWS}, {T0}
        s_addc_u32 s13, s{pWS + 1}, 0
        s_cmp_lg_u32 {sW}, 9
        s_cbranch_scc1 L_consumer''')

    a(f'''v_and_b32 v1, 7, v0
        v_lshlrev_b32 v1, 8, v1
        s_mov_b32 {T0}, {CTR}
        buffer_load_dword v10, v1, {WS}, {T0} offen sc1''')
    if cfg.early:
        a(f'''s_lshl_b32 {T2}, {sJ}, 13
            v_lshlrev_b32 v2, 7, v0
            buffer_load_dword v11, v2, {WL}, {T2} offen sc1 nt
            buffer_load_dword v11, v2, {WL}, {T2} offen sc1''')
    a(f'''        s_getreg_b32 {T1}, hwreg(HW_REG_XCC_ID, 0, 8)
        s_lshl_b32 {T1}, {T1}, 16
        v_and_b32 v2, 31, v0
        v_lshlrev_b32 v2, 4, v2
        s_lshl_b32 {T2}, {sJ}, 4
        v_mov_b32 v3, {T2}
        s_mov_b32 {T3}, {HELLO}
        s_add_u32 s20, s{pWS}, {CTR}
        s_addc_u32 s21, s{pWS + 1}, 0
        v_mov_b32 v1, 0
        s_waitcnt lgkmcnt(0)
        s_add_u32 {sTag}, {sTag}, {TAGK}
        s_and_b32 {sTag}, {sTag}, 0xffff
        s_or_b32 {T1}, {T1}, {sTag}
        v_mov_b32 v4, {T1}
        v_add_u32 v5, {TAGC}, v4
        v_add_u32 v6, {TAGC}, v5
        v_add_u32 v7, {TAGC}, v6
        s_mov_b64 exec, 1
        buffer_store_dwordx4 v[4:7], v3, {WL}, {T3} offen
        s_mov_b64 exec, -1
        s_barrier
        s_mov_b32 s22, {cfg.hello}''')
    a.label('L_hello')
    a(f'''buffer_load_dwordx4 v[12:15], v2, {WL}, {T3} offen sc1 nt
        s_sub_u32 s22, s22, 1
        s_cbranch_scc1 L_hello2
        s_waitcnt vmcnt(0)
        v_xor_b32 v12, v12, v4
        v_xor_b32 v13, v13, v5
        v_xor_b32 v14, v14, v6
        v_xor_b32 v15, v15, v7
        v_or_b32 v12, v12, v13
        v_or3_b32 v12, v12, v14, v15
        v_cmp_ne_u32 vcc, 0, v12
        s_cbranch_vccnz L_hello
        v_mov_b32 v2, 1
        ds_write_b32 v1, v2 offset:{LOCAL}''')
    a.label('L_hello2')
    a(f'''s_waitcnt vmcnt(0)
        s_mov_b32 s22, {cfg.ctl0}
        s_mov_b32 s23, 0
        s_mov_b32 s24, {sJ}
        s_lshr_b32 {T0}, {sJ}, 3
        s_mul_i32 {T0}, {T0}, 3
        s_add_u32 s25, {T0}, {sC}''')
    if not cfg.ctl:
        a('s_endpgm')
    a.label('L_ctl1')
    a(f's_sleep 1\nds_read_b32 v2, v1 offset:{LANDED}')
    timeout()
    a(f'''s_waitcnt lgkmcnt(0)
        v_readfirstlane_b32 {T0}, v2
        s_cmp_lt_i32 {T0}, s22
        s_cbranch_scc1 L_ctl1
        s_and_b32 {T1}, s24, 7
        s_lshl_b32 {T2}, {T1}, 8
        s_mov_b32 s26, 1
        s_atomic_add s26, s[20:21], {T2} glc
        v_readlane_b32 {T1}, v10, {T1}
        s_add_u32 s24, s24, s25
        s_add_u32 s22, s22, {cfg.ctlstep}
        s_add_u32 {T1}, {T1}, s23
        s_add_u32 s23, s23, 32
        s_waitcnt lgkmcnt(0)
        s_sub_i32 s26, s26, {T1}
        s_cmp_lt_i32 s26, {cfg.ctllo}
        s_cselect_b32 {T0}, 1, 0
        s_cmp_ge_i32 s26, {cfg.ctlhi}
        s_cselect_b32 {T0}, 2, {T0}
        v_mov_b32 v2, {T0}
        ds_write_b32 v1, v2 offset:{MODE}
        s_cmp_lt_u32 s22, {N_G - 2}
        s_cbranch_scc1 L_ctl1
        s_endpgm''')

    stamp_names.clear()
    vL4, vTr, vAct, vPub, vFl, vW4, vP = 'v1', 'v2', 'v3', 'v4', 'v5', 'v6', 'v7'
    t = [f'v{i}' for i in range(8, 16)]
    KF, S, KF2, WF, S0, OA = 16, 48, 80, 112, 128, 136
    QF = WF
    vFs, vU0, vU1, vSb0, vSb1, vTagP, vTagQ, vZ, vActW, vM, vL16, vK0 = [f'v{i}' for i in range(140, 152)]
    vGa, vXr, vGb = vU0, vU1, vSb0
    vGrp, vNq, vB2, vN, vBN = [f'v{i}' for i in range(152, 157)]
    sLd, sFF, sHi, sLoc, sLo16 = 's53', 's7', 's45', 's37', 's36'
    MK = [f's[{i}:{i + 1}]' for i in range(20, 34, 2)]
    v = lambda i, n=1: f'v{i}' if n == 1 else f'v[{i}:{i + n - 1}]'

    def rb(x):
        a(f'v_cvt_pk_bf16_f32 {x}, {x}, {x}\nv_lshlrev_b32 {x}, 16, {x}')

    def wait_landed(n):
        L, D = a.new('L_wl'), a.new('L_wd')
        a(f's_cmp_ge_i32 {sLd}, {n}\ns_cbranch_scc1 {D}')
        a.label(L)
        a(f'ds_read_b32 {t[7]}, {vL4} offset:{LANDED}')
        timeout()
        a(f'''s_waitcnt lgkmcnt(0)
            v_readfirstlane_b32 {sLd}, {t[7]}
            s_cmp_lt_i32 {sLd}, {n}
            s_cbranch_scc1 {L}''')
        a.label(D)

    def set_freed(n):
        a(f'v_mov_b32 {t[7]}, {n}\nds_write_b32 {vW4}, {t[7]} offset:{FREED}')

    def read_local():
        a(f'ds_read_b32 {t[7]}, {vZ} offset:{LOCAL}\ns_waitcnt lgkmcnt(0)\nv_readfirstlane_b32 {sLoc}, {t[7]}')

    def csync(k, reads='', spec=None):
        spec = cfg.spec if spec is None else spec
        L = a.new('L_cs')
        a(f'v_mov_b32 {t[7]}, {k}\nds_write_b32 {vW4}, {t[7]} offset:{FLAG}')
        a.label(L)
        a(f'ds_read_b32 {t[7]}, {vFl} offset:{FLAG}')
        if spec:
            a(reads)
        timeout()
        a(f'''s_waitcnt lgkmcnt(0)
            v_cmp_gt_u32 vcc, {k}, {t[7]}
            s_cbranch_vccnz {L}''')
        if not spec and reads:
            a(reads)
            a('s_waitcnt lgkmcnt(0)')

    def act_reads(base, n, dst):
        return '\n'.join(f'ds_read_b128 {v(dst + 4 * j, 4)}, {vAct} offset:{base + 256 * j}' for j in range(n))

    def tr_reads(addr, blocks, dst):
        for i, off in enumerate(blocks):
            a(f'ds_read_b64_tr_b16 {v(dst + 4 * i, 2)}, {addr} offset:{off}')
            a(f'ds_read_b64_tr_b16 {v(dst + 4 * i + 2, 2)}, {addr} offset:{off + 4096}')

    def mfma(d, A, B, first):
        a(f'v_mfma_f32_16x16x32_bf16 {v(d, 4)}, {v(A, 4)}, {v(B, 4)}, {"0" if first else v(d, 4)}')

    def store_local(tx):
        if cfg.nocomm & 34:
            return
        G, D = a.new('L_sg'), a.new('L_sd')
        a(f's_cmp_eq_u32 {sLoc}, 0\ns_cbranch_scc1 {G}')
        a(tx)
        a.label(D)
        ool.append(f'{G}:\n{tx} sc1\ns_branch {D}')

    def publish4(d, soff, addr=vPub):
        a(f'v_bfi_b32 {v(d)}, {sFF}, {vTagP}, {v(d)}')
        a(f'v_bfi_b32 {v(d + 1)}, {sFF}, {vTagP}, {v(d + 1)}')
        store_local(f'buffer_store_dwordx4 {v(d, 4)}, {addr}, {WL}, {soff} offen')

    def publish16(x, addr, soff):
        a(f'v_cvt_pk_bf16_f32 {x}, {x}, {x}\nv_bfi_b32 {x}, {sLo16}, {vTagQ}, {x}')
        if not cfg.nocomm & 18:
            a(f'buffer_store_dword {x}, {addr}, {WS}, {soff} offen sc1')

    def next_gen():
        a(f'v_add_u32 {vTagP}, {TAGK}, {vTagP}\nv_add_u32 {vTagQ}, {TAGK}, {vTagQ}')

    def gather(loads, sleep=0, clean=True, light=None):
        L, D, R = a.new('L_g'), a.new('L_gd'), a.new('L_gr')
        if cfg.nocomm & 1:
            return
        for ld in loads:
            a(ld[0])
        a.label(L)
        a('s_waitcnt vmcnt(0)')
        if not cfg.nocomm & 4:
            one = len(loads) == 1
            for i, (tx, r, two) in enumerate(loads):
                mk = 'vcc' if one else MK[i]
                if two:
                    a(f'v_bitop3_b32 {t[6 + (i & 1)]}, {v(r)}, {v(r + 1)}, {vTagQ} bitop3:0x7e')
                    a(f'v_cmp_ne_u32_sdwa {mk}, {t[6 + (i & 1)]}, {vZ} src0_sel:BYTE_0 src1_sel:DWORD')
                else:
                    a(f'v_cmp_ne_u32_sdwa {mk}, {v(r)}, {vTagQ} src0_sel:WORD_0 src1_sel:WORD_0')
            if one:
                a(f's_cbranch_vccnz {R}')
            else:
                a(f's_or_b64 vcc, {MK[0]}, {MK[1]}')
                for i in range(2, len(loads)):
                    a(f's_or_b64 vcc, vcc, {MK[i]}')
                a(f's_cbranch_scc1 {R}')
            o = [f'{R}:', f's_sub_u32 {sTO}, {sTO}, 1', 's_cbranch_scc1 L_end']
            if light is not None:
                H = a.new('L_gh')
                o += [f's_wqm_b64 vcc, {MK[0]}', 's_cmp_eq_u64 vcc, -1', f's_cbranch_scc0 {H}']
                if light:
                    o.append(f's_sleep {light}')
                o += [loads[0][0], f's_branch {L}', f'{H}:']
            if sleep:
                o.append(f's_sleep {sleep}')
            for i, ld in enumerate(loads):
                N = a.new('L_gn')
                o.append(f's_wqm_b64 exec, {"vcc" if one else MK[i]}')
                if not one:
                    o.append(f's_cbranch_execz {N}')
                o += [ld[0], f'{N}:']
            o += ['s_mov_b64 exec, -1', f's_branch {L}']
            ool.append('\n'.join(o))
        if clean:
            for tx, r, two in loads:
                if two:
                    a(f'v_and_b32 {v(r)}, {sHi}, {v(r)}\nv_and_b32 {v(r + 1)}, {sHi}, {v(r + 1)}')
                else:
                    a(f'v_and_b32 {v(r)}, 0xffff0000, {v(r)}')

    def preread(txs):
        if cfg.preread == 1:
            for tx in txs:
                a(tx + cfg.prent)
        if cfg.preread >= 2:
            for tx in txs:
                a(tx + 'nt')
            if cfg.preread == 3:
                a('s_waitcnt vmcnt(0)')
            for tx in txs:
                a(tx)

    def ld4(r, addr, soff, off=0, nt=False):
        return (f'buffer_load_dwordx4 {v(r, 4)}, {addr}, {WL}, {soff} offen offset:{off} sc1' + (' nt' if nt and not cfg.early else ''), r, True)

    def ld1(r, addr, soff, off=0):
        return (f'buffer_load_dword {v(r)}, {addr}, {WS}, {soff} offen offset:{off} sc1', r, False)

    def act_pos(dst, k, b):
        a(f'''v_lshrrev_b32 {dst}, 5, {k}
            v_lshlrev_b32 {dst}, 8, {dst}
            v_bfe_u32 {t[6]}, {k}, 2, 2
            v_lshl_add_u32 {dst}, {t[6]}, 6, {dst}
            v_lshl_add_u32 {dst}, {b}, 4, {dst}
            v_bfe_u32 {t[6]}, {k}, 4, 1
            v_lshl_add_u32 {dst}, {t[6]}, 3, {dst}
            v_and_b32 {t[6]}, 3, {k}
            v_lshl_add_u32 {dst}, {t[6]}, 1, {dst}''')

    def swap_reduce4(*rs):
        for r in rs:
            a(f'v_permlane32_swap_b32 {v(r)}, {v(r + 2)}\nv_permlane32_swap_b32 {v(r + 1)}, {v(r + 3)}')
        for r in rs:
            a(f'v_add_f32 {v(r)}, {v(r)}, {v(r + 2)}\nv_add_f32 {v(r + 1)}, {v(r + 1)}, {v(r + 3)}')
        for r in rs:
            a(f'v_permlane16_swap_b32 {v(r)}, {v(r + 1)}')
        for r in rs:
            a(f'v_add_f32 {v(r)}, {v(r)}, {v(r + 1)}')

    def dpp(op, x, ctl):
        a(f'{op}_dpp {x}, {x}, {x} {ctl} row_mask:0xf bank_mask:0xf')

    def tree(r, steps):
        for st in steps:
            for i in range(st):
                a(f'v_add_f32 {v(r + i)}, {v(r + i)}, {v(r + i + st)}')

    def gemv128(k, act, addr, soff, areg, pub, name, sleep=0, pos=vActW, pipe=0):
        if pipe and not cfg.nocomm:
            L, D = a.new('L_pp'), a.new('L_pd')
            P = areg + 16
            for i in range(3):
                a(ld1(P + i, addr, soff)[0])
                if i == 0:
                    a(f's_waitcnt vmcnt(0)\nv_cmp_ne_u32_sdwa vcc, {v(P)}, {vTagQ} src0_sel:WORD_0 src1_sel:WORD_0\nv_mov_b32 {v(areg)}, {v(P)}\ns_cbranch_vccz {D}')
                    a(ld1(P, addr, soff)[0])
                a(f's_sleep {pipe}')
            a.label(L)
            for i in range(4):
                a(ld1(P + (i + 3) % 4, addr, soff)[0])
                a(f'''s_waitcnt vmcnt(3)
                    v_cmp_ne_u32_sdwa vcc, {v(P + i)}, {vTagQ} src0_sel:WORD_0 src1_sel:WORD_0
                    v_mov_b32 {v(areg)}, {v(P + i)}
                    s_cbranch_vccz {D}
                    s_sleep {pipe}''')
            timeout()
            a(f's_branch {L}')
            a.label(D)
        else:
            gather([ld1(areg, addr, soff)], clean=False, sleep=sleep)
        stamp(name)
        a(f'ds_write_b16_d16_hi {pos}, {v(areg)} offset:{act}')
        csync(k, act_reads(act, 4, areg))
        for j in range(4):
            mfma(OA, WF + 4 * j, areg + 4 * j, j == 0)
        publish4(OA, pub)

    a.label('L_consumer')
    if DBG:
        for i in range(32):
            a(f's_mov_b32 s{64 + i}, 0')
    a(f'''s_sub_u32 {sW}, {sW}, 1
        v_lshlrev_b32 {vL4}, 2, v0
        s_lshr_b32 {T0}, {sW}, 1
        s_lshl_b32 {T0}, {T0}, 11
        s_and_b32 {T1}, {sW}, 1
        s_lshl_b32 {T1}, {T1}, 8
        s_add_u32 {T0}, {T0}, {T1}
        s_and_b32 {T1}, {sJ}, 3
        s_lshl_b32 {T1}, {T1}, 9
        s_add_u32 {T0}, {T0}, {T1}
        v_add_u32 {t[4]}, {T0}, {vL4}
        global_load_dword {v(KF + 4)}, {t[4]}, {sp(pC)}
        s_mov_b32 {sLd}, 0
        s_movk_i32 {sFF}, 0xff
        s_movk_i32 {sHi}, 0xff00
        s_mov_b32 {sLo16}, 0xffff
        v_mov_b32 {vZ}, 0
        v_and_b32 {vFl}, 28, {vL4}
        s_lshl_b32 {T0}, {sW}, 2
        v_mov_b32 {vW4}, {T0}
        v_lshlrev_b32 {vL16}, 4, v0
        v_lshrrev_b32 {vGrp}, 4, v0
        v_and_b32 {vNq}, 3, v0
        v_bfe_u32 {vB2}, v0, 2, 2
        v_lshl_add_u32 {vN}, {vNq}, 2, {vGrp}
        v_lshlrev_b32 {vBN}, 6, {vB2}
        v_lshl_add_u32 {vBN}, {vN}, 2, {vBN}
        s_cmp_lg_u32 {sJ}, 24
        s_cbranch_scc1 L_nox''')
    a(f'''s_lshl_b32 {T0}, {sW}, 10
        v_add_u32 {t[2]}, {T0}, {vL16}
        s_lshl3_add_u32 {T0}, {sC}, {sW}
        s_lshl_b32 {T0}, {T0}, 5
        v_lshlrev_b32 {t[3]}, 11, {vB2}
        v_lshl_add_u32 {t[3]}, {vN}, 1, {t[3]}
        v_add_u32 {t[3]}, {T0}, {t[3]}
        global_load_dwordx4 {v(KF, 4)}, {t[2]}, {sp(pX)}
        global_load_ushort {v(S0 + 4)}, {t[3]}, {sp(pX)}''')
    a.label('L_nox')
    a(f'''v_lshrrev_b32 {t[0]}, 2, v0
        v_and_b32 {t[1]}, 7, {t[0]}
        v_lshlrev_b32 {t[1]}, 1, {t[1]}
        v_bfe_u32 {t[2]}, v0, 1, 1
        s_lshl_b32 {T0}, {sW}, 1
        v_or_b32 {t[2]}, {T0}, {t[2]}
        v_xor_b32 {t[2]}, {t[2]}, {t[1]}
        v_lshlrev_b32 {vTr}, 8, {t[0]}
        v_lshl_add_u32 {vTr}, {t[2]}, 4, {vTr}
        v_and_b32 {t[2]}, 1, v0
        v_lshl_add_u32 {vTr}, {t[2]}, 3, {vTr}''')
    a(f'''v_lshlrev_b32 {vAct}, 6, {vGrp}
        v_lshl_add_u32 {vAct}, {vNq}, 4, {vAct}
        v_lshlrev_b32 {vPub}, 4, {vGrp}
        v_lshl_add_u32 {vPub}, {vNq}, 6, {vPub}
        v_lshl_or_b32 {vPub}, {vB2}, 29, {vPub}
        v_and_b32 {t[2]}, 7, v0
        v_lshlrev_b32 {vP}, 7, {vGrp}
        v_lshl_add_u32 {vP}, {t[2]}, 4, {vP}
        v_lshlrev_b32 {t[2]}, 1, {t[2]}
        v_xor_b32 {t[2]}, {t[2]}, {vGrp}
        v_and_b32 {t[1]}, 15, v0
        v_lshlrev_b32 {vK0}, 8, {t[1]}
        v_lshl_add_u32 {vK0}, {t[2]}, 4, {vK0}
        s_lshl_b32 {T0}, {sW}, 4
        v_add_u32 {t[2]}, {T0}, {vN}''')
    act_pos(vActW, t[2], vB2)
    if DBG:
        stamp('entry')
        a('s_mov_b32 s64, s96')
    stamp('start')
    a(f'''s_barrier
        s_waitcnt lgkmcnt(0)
        s_add_u32 {sTag}, {sTag}, {TAGK}
        v_mov_b32 {t[0]}, {TAGC}
        v_mad_u32_u24 {vTagP}, {vGrp}, {t[0]}, {sTag}
        v_mad_u32_u24 {vTagQ}, {vNq}, {t[0]}, {sTag}
        s_cmp_ge_u32 s2, 192
        s_cbranch_scc1 L_noA''')
    a(f'''s_and_b32 {T0}, {sW}, 1
        s_lshl_b32 {T0}, {T0}, 7
        v_lshl_add_u32 {t[0]}, v0, 1, {T0}
        s_lshr_b32 {T0}, {sW}, 1
        v_mov_b32 {t[1]}, {T0}''')
    act_pos(t[2], t[0], t[1])
    a(f'''s_waitcnt vmcnt(0)
        v_lshlrev_b32 {t[0]}, 16, {v(KF + 4)}
        v_and_b32 {t[1]}, 0xffff0000, {v(KF + 4)}
        v_mul_f32 {t[3]}, {f32(-LOG2E)}, {t[0]}
        v_mul_f32 {t[4]}, {f32(-LOG2E)}, {t[1]}
        v_exp_f32 {t[3]}, {t[3]}
        v_exp_f32 {t[4]}, {t[4]}
        v_add_f32 {t[3]}, 1.0, {t[3]}
        v_add_f32 {t[4]}, 1.0, {t[4]}
        v_rcp_f32 {t[3]}, {t[3]}
        v_rcp_f32 {t[4]}, {t[4]}
        v_mul_f32 {t[0]}, {t[0]}, {t[3]}
        v_mul_f32 {t[1]}, {t[1]}, {t[4]}
        v_cvt_pk_bf16_f32 {t[0]}, {t[0]}, {t[1]}
        ds_write_b32 {t[2]}, {t[0]} offset:{ACT_A}''')
    csync(1, act_reads(ACT_A, 8, S))
    a(f'''v_add_u32 {t[0]}, {slot(N_A)}, {vTr}
        s_lshr_b32 {T1}, {sJ}, 2
        s_lshl3_add_u32 {T1}, {T1}, {sW}
        s_and_b32 {T2}, {sJ}, 3
        s_lshl2_add_u32 {T1}, {T1}, {T2}
        s_lshl_b32 {T1}, {T1}, 8
        s_add_u32 {T1}, {T1}, {LM}''')
    for hf in range(2):
        wait_landed(N_A + 4 * hf + 4)
        tr_reads(t[0], [8192 * (4 * hf + j) for j in range(4)], KF + 16 * hf)
        if hf:
            read_local()
        else:
            a('s_waitcnt lgkmcnt(0)')
        set_freed(N_A + 4 * hf + 4)
        for j in range(4 * hf, 4 * hf + 4):
            mfma(OA, KF + 4 * j, S + 4 * j, j == 0)
    publish4(OA, T1)
    stamp('A_pub')
    a.label('L_noA')
    a(f'v_add_u32 {t[0]}, {slot(N_Q)}, {vTr}')
    wait_landed(N_K)
    tr_reads(t[0], [8192 * j for j in range(4)], WF)
    a(f's_add_u32 s54, {sW}, {N_K}\ns_waitcnt lgkmcnt(0)')
    set_freed('s54')
    a(f'''s_lshl_b32 {T1}, {sW}, 10
        s_lshl3_add_u32 {T3}, {sC}, {sW}
        s_cmp_eq_u32 {sJ}, 25
        s_cbranch_scc1 L_us
        s_cmp_lg_u32 {sJ}, 24
        s_cbranch_scc1 L_nored''')
    sm, sq = t[0], t[1]
    a('s_waitcnt vmcnt(0)')
    for i in range(4):
        a(f'v_lshlrev_b32 {t[4]}, 16, {v(KF + i)}\nv_and_b32 {t[5]}, 0xffff0000, {v(KF + i)}')
        if i == 0:
            a(f'v_add_f32 {sm}, {t[4]}, {t[5]}\nv_mul_f32 {sq}, {t[4]}, {t[4]}')
        else:
            a(f'v_add_f32 {sm}, {sm}, {t[4]}\nv_fmac_f32 {sq}, {t[4]}, {t[4]}\nv_add_f32 {sm}, {sm}, {t[5]}')
        a(f'v_fmac_f32 {sq}, {t[5]}, {t[5]}')
    a(f'''v_permlane32_swap_b32 {t[0]}, {t[1]}
        v_add_f32 {t[0]}, {t[0]}, {t[1]}
        v_mov_b32 {t[1]}, {t[0]}
        v_permlane16_swap_b32 {t[0]}, {t[1]}
        v_add_f32 {t[0]}, {t[0]}, {t[1]}''')
    for r in (8, 4, 2, 1):
        dpp('v_add_f32', t[0], f'row_ror:{r}')
    a(f'''v_lshrrev_b32 {t[1]}, 5, v0
        v_lshlrev_b32 {t[1]}, 2, {t[1]}
        v_lshl_add_u32 {t[1]}, {vW4}, 1, {t[1]}
        ds_write_b32 {t[1]}, {t[0]} offset:{ST1}
        v_lshlrev_b32 {t[0]}, 4, {vB2}''')
    csync(1, f'ds_read_b128 {v(S0, 4)}, {t[0]} offset:{ST1}')
    vNrm = v(S0 + 4)
    a(f'''v_add_f32 {sm}, {v(S0)}, {v(S0 + 2)}
        v_add_f32 {sq}, {v(S0 + 1)}, {v(S0 + 3)}
        v_mul_f32 {sm}, {f32(1 / 1024)}, {sm}
        v_mul_f32 {sq}, {f32(1 / 1024)}, {sq}
        v_fma_f32 {sq}, -{sm}, {sm}, {sq}
        v_max_f32 {sq}, 0, {sq}''')
    rb(sq)
    rb(sm)
    a(f'v_add_f32 {sq}, {f32(1e-5)}, {sq}')
    rb(sq)
    a(f'v_sqrt_f32 {sq}, {sq}')
    rb(sq)
    a(f'v_rcp_f32 {sq}, {sq}')
    a(f'v_lshlrev_b32 {vNrm}, 16, {vNrm}\nv_sub_f32 {vNrm}, {vNrm}, {sm}')
    rb(vNrm)
    a(f'v_mul_f32 {vNrm}, {vNrm}, {sq}')
    rb(vNrm)
    a(f'''s_add_u32 {T1}, {T1}, {LM}
        s_add_u32 {T2}, {T1}, 8192
        s_lshl_b32 {T3}, {T3}, 8
        s_add_u32 {T3}, {T3}, {HH}''')
    gather([ld4(KF, vL16, T1, nt=True), ld4(KF + 4, vL16, T2, nt=True)], sleep=cfg.lsleep)
    swap_reduce4(KF, KF + 4)
    rb(v(KF))
    rb(v(KF + 4))
    a(f'v_add_f32 {v(KF + 4)}, 1.0, {v(KF + 4)}')
    rb(v(KF + 4))
    a(f'v_mul_f32 {v(KF + 4)}, {vNrm}, {v(KF + 4)}')
    rb(v(KF + 4))
    a(f'v_add_f32 {v(KF)}, {v(KF)}, {v(KF + 4)}')
    publish16(v(KF), vBN, T3)
    stamp('H_pub')
    a('s_branch L_nored')
    a.label('L_us')
    a(f'''s_add_u32 {T1}, {T1}, {LM + 3 * 8192}
        s_add_u32 {T2}, {T1}, 8192
        s_lshl_b32 {T3}, {T3}, 9
        s_add_u32 {T3}, {T3}, {US}
        v_lshlrev_b32 {t[0]}, 3, v0''')
    gather([ld4(KF, vL16, T1, nt=True), ld4(KF + 4, vL16, T2, nt=True)], sleep=cfg.fsleep)
    swap_reduce4(KF, KF + 4)
    rb(v(KF + 4))
    a(f'''v_add_f32 {v(KF + 1)}, 1.0, {v(KF + 4)}
        v_cvt_pk_bf16_f32 {v(KF)}, {v(KF)}, {v(KF)}
        v_cvt_pk_bf16_f32 {v(KF + 1)}, {v(KF + 1)}, {v(KF + 1)}
        v_bfi_b32 {v(KF)}, {sLo16}, {vTagQ}, {v(KF)}''')
    if not cfg.nocomm & 18:
        a(f'buffer_store_dwordx2 {v(KF, 2)}, {t[0]}, {WS}, {T3} offen sc1')
    a.label('L_nored')

    def pace(n, lead):
        a(f's_cmp_lt_u32 s2, 192\ns_cselect_b32 {T0}, {n}, {n + lead}')
        wait_landed(T0)

    def k_pull(i, dst):
        a(f's_add_u32 {T0}, s54, 1')
        wait_landed(T0)
        a(f'''s_and_b32 {T0}, s54, 15
            s_lshl_b32 {T0}, {T0}, 13
            s_add_u32 {T0}, {T0}, {RING0}
            v_add_u32 {t[0]}, {T0}, {vK0}
            v_xor_b32 {t[1]}, 64, {t[0]}
            v_xor_b32 {t[2]}, 0x80, {t[0]}
            v_xor_b32 {t[3]}, 0xc0, {t[0]}''')
        for tt in range(2):
            for j in range(4):
                a(f'ds_read_b128 {v(dst + 16 * tt + 4 * j, 4)}, {t[j]} offset:{4096 * tt}')
        if i < 3:
            a(f's_add_u32 s54, s54, 8')
        else:
            a(f's_mov_b32 s54, {N_O}')
        a('s_waitcnt lgkmcnt(0)')
        set_freed('s54')

    KSRC = [KF, S, KF2, S]
    k_pull(0, KF)
    pace(N_K + cfg.e1at, cfg.e1lead)
    read_local()
    stamp('e1_go')
    a(f'''s_and_b32 {T0}, {sJ}, 7
        s_lshl3_add_u32 {T1}, {T0}, {sW}
        s_lshl_b32 {T1}, {T1}, 8
        s_add_u32 {T1}, {T1}, {HH}
        s_and_b32 {T2}, {sJ}, 24
        s_add_u32 {T2}, {T2}, {sW}
        s_lshl3_add_u32 {T2}, {T2}, {T0}
        s_lshl_b32 {T2}, {T2}, 8''')
    assert LQ == 0
    gemv128(2, ACT_B, vBN, T1, KF2, T2, 'e1', sleep=cfg.fsleep)
    stamp('B_pub')
    k_pull(1, S)
    a(f'''s_cmp_lg_u32 {sW}, 0
        s_cbranch_scc1 L_noq
        s_lshl_b32 {T1}, {sJ}, 11
        s_lshl_b32 {T2}, {sC}, 5
        s_add_u32 {T2}, {T2}, {sJ}
        s_lshl_b32 {T2}, {T2}, 6
        s_add_u32 {T2}, {T2}, {QQ}
        v_lshlrev_b32 {t[0]}, 14, {vB2}
        v_lshl_add_u32 {t[0]}, {vN}, 2, {t[0]}''')
    gather([ld4(KF2, vL16, T1, nt=True), ld4(KF2 + 4, vL16, T1, 1024, nt=True)], sleep=cfg.lsleep)
    tree(KF2, (4,))
    swap_reduce4(KF2)
    publish16(v(KF2), t[0], T2)
    stamp('Q_pub')
    a.label('L_noq')
    k_pull(2, KF2)
    pace(N_K + cfg.e2at, cfg.e2lead)
    stamp('e2_go')
    sPh, sB, sG, sS = 's55', 's56', 's57', 's44'
    a(f'''s_lshr_b32 {sPh}, {sJ}, 4
        s_lshl1_add_u32 {T0}, {sC}, {sPh}
        s_and_b32 {sB}, {T0}, 3
        s_lshr_b32 {sG}, {T0}, 2
        s_and_b32 {sS}, {sJ}, 15''')
    a(f'''s_lshl3_add_u32 {T0}, {sG}, {sW}
        s_lshl_b32 {T0}, {T0}, 9
        s_lshl_b32 {T1}, {sB}, 14
        s_add_u32 {T0}, {T0}, {T1}
        s_add_u32 {T0}, {T0}, {QQ}
        s_mul_i32 {T1}, {sW}, 272
        v_lshrrev_b32 {t[0]}, 1, {vBN}
        v_add_u32 {t[0]}, {T1}, {t[0]}
        v_mul_u32_u24 {t[1]}, 68, {vFl}
        v_lshl_add_u32 {t[1]}, {vGrp}, 4, {t[1]}''')
    gather([ld1(S0, vBN, T0), ld1(S0 + 1, vBN, T0, 256)], sleep=cfg.fsleep, clean=False)
    stamp('e2')
    a(f'''ds_write_b16_d16_hi {t[0]}, {v(S0)} offset:{QB}
        ds_write_b16_d16_hi {t[0]}, {v(S0 + 1)} offset:{QB + 128}''')
    csync(3, '\n'.join(f'ds_read_b128 {v(QF + 4 * j, 4)}, {t[1]} offset:{QB + 64 * j}' for j in range(4)))
    stamp('q_ready')
    SC = [S0, KF, KF + 8, KF + 16]
    for i in range(4):
        src = KSRC[i]
        if i == 3:
            k_pull(i, src)
        for j in range(4):
            for tt in range(2):
                mfma(SC[i] + 4 * tt, src + 16 * tt + 4 * j, QF + 4 * j, j == 0)
        for r in range(0, 8, 2):
            x, y = v(SC[i] + r), v(SC[i] + r + 1)
            a(f'''v_cvt_pk_bf16_f32 {y}, {x}, {y}
                v_lshlrev_b32 {x}, 16, {y}
                v_and_b32 {y}, 0xffff0000, {y}
                v_mul_f32 {x}, {f32(128 ** -0.5)}, {x}
                v_mul_f32 {y}, {f32(128 ** -0.5)}, {y}
                v_cvt_pk_bf16_f32 {y}, {x}, {y}
                v_lshlrev_b32 {x}, 16, {y}
                v_and_b32 {y}, 0xffff0000, {y}''')
            if i == 0 and r == 0:
                a(f'v_max_f32 {vM}, {x}, {y}')
            else:
                a(f'v_max3_f32 {vM}, {vM}, {x}, {y}')
    a(f'''v_mov_b32 {t[0]}, {vM}
        v_permlane32_swap_b32 {vM}, {t[0]}
        v_max_f32 {vM}, {vM}, {t[0]}
        v_mov_b32 {t[0]}, {vM}
        v_permlane16_swap_b32 {vM}, {t[0]}
        v_max_f32 {vM}, {vM}, {t[0]}
        v_lshlrev_b32 {t[1]}, 3, {vFl}
        v_add_u32 {t[2]}, {t[1]}, {vW4}
        ds_write_b32 {t[2]}, {vM} offset:{MX}''')
    csync(4, f'ds_read_b128 {v(KF2, 4)}, {t[1]} offset:{MX}\nds_read_b128 {v(KF2 + 4, 4)}, {t[1]} offset:{MX + 16}')
    a(f'''v_max3_f32 {vM}, {v(KF2)}, {v(KF2 + 1)}, {v(KF2 + 2)}
        v_max3_f32 {vM}, {vM}, {v(KF2 + 3)}, {v(KF2 + 4)}
        v_max3_f32 {vM}, {vM}, {v(KF2 + 5)}, {v(KF2 + 6)}
        v_max_f32 {vM}, {vM}, {v(KF2 + 7)}
        s_lshl_b32 {T0}, {sW}, 9
        v_add_u32 {t[3]}, {T0}, {vP}''')
    for i in range(4):
        for r in range(8):
            x = v(SC[i] + r)
            a(f'v_sub_f32 {x}, {x}, {vM}\nv_mul_f32 {x}, {f32(LOG2E)}, {x}\nv_exp_f32 {x}, {x}')
        for r in range(8):
            x = v(SC[i] + r)
            if i == 0 and r == 0:
                continue
            if i == 0 and r == 1:
                a(f'v_add_f32 {t[0]}, {v(SC[0])}, {x}')
            else:
                a(f'v_add_f32 {t[0]}, {t[0]}, {x}')
        for r in range(4):
            a(f'v_cvt_pk_bf16_f32 {v(KF2 + 4 * i + r)}, {v(SC[i] + 2 * r)}, {v(SC[i] + 2 * r + 1)}')
        a(f'ds_write_b128 {t[3]}, {v(KF2 + 4 * i, 4)} offset:{PB + 4096 * i}')
    a(f'''v_mov_b32 {t[4]}, {t[0]}
        v_permlane32_swap_b32 {t[0]}, {t[4]}
        v_add_f32 {t[0]}, {t[0]}, {t[4]}
        v_mov_b32 {t[4]}, {t[0]}
        v_permlane16_swap_b32 {t[0]}, {t[4]}
        v_add_f32 {t[0]}, {t[0]}, {t[4]}
        ds_write_b32 {t[2]}, {t[0]} offset:{LS}''')
    csync(5, f'ds_read_b128 {v(KF2, 4)}, {t[1]} offset:{LS}\nds_read_b128 {v(KF2 + 4, 4)}, {t[1]} offset:{LS + 16}')
    a(f's_cmp_lg_u32 {sW}, 0\ns_cbranch_scc1 L_noml')
    tree(KF2, (4, 2, 1))
    a(f'''v_bfi_b32 {v(KF2)}, {sFF}, {vTagQ}, {v(KF2)}
        v_bfi_b32 {v(KF2 + 1)}, {sFF}, {vTagQ}, {vM}
        s_lshl_b32 {T0}, {sJ}, 6
        s_add_u32 {T0}, {T0}, {LL}
        v_lshlrev_b32 {t[0]}, 3, v0
        s_mov_b64 exec, 0xff''')
    store_local(f'buffer_store_dwordx2 {v(KF2, 2)}, {t[0]}, {WL}, {T0} offen')
    a('s_mov_b64 exec, -1')
    a.label('L_noml')
    stamp('p_ready')
    a(f'v_add_u32 {t[0]}, {slot(N_O)}, {vTr}')
    wait_landed(N_V)
    tr_reads(t[0], [8192 * j for j in range(4)], WF)
    a(f'''s_mov_b32 s54, {N_V}
        v_mov_b32 {v(OA)}, 0
        v_mov_b32 {v(OA + 1)}, 0
        v_mov_b32 {v(OA + 2)}, 0
        v_mov_b32 {v(OA + 3)}, 0''')

    def v_loop(end):
        L = a.new('L_v')
        a.label(L)
        a(f'''s_and_b32 {T1}, s54, 15
            s_lshl_b32 {T1}, {T1}, 13
            s_add_u32 {T1}, {T1}, {RING0}
            v_add_u32 {t[0]}, {T1}, {vTr}
            s_add_u32 s54, s54, 1
            ds_read_b128 {v(KF + 4, 4)}, {vP} offset:{PB}''')
        wait_landed('s54')
        tr_reads(t[0], [0], KF)
        a(f'''v_add_u32 {vP}, 512, {vP}
            v_mov_b32 {t[7]}, s54
            s_cmp_lt_u32 s54, {end}
            s_waitcnt lgkmcnt(0)''')
        mfma(OA, KF, KF + 4, False)
        a(f'ds_write_b32 {vW4}, {t[7]} offset:{FREED}\ns_cbranch_scc1 {L}')

    v_loop(N_V + cfg.preat)
    stamp('v_half')
    (vOpA, vSeg, vSeg2, vN4, vOA_, vXS, vXA, vGA_, vEP0, vStW, vStR, vGA0, vGA1, vFA, vGS, vFTr, vOut, vMk, vActD, vHint) = [v(KF2 + i) for i in range(20)]
    sJJ, sKsE = 's58', 's59'
    sLoP, sLoG, sOoP, sOoG, sLdP, sRg, sXp = 's60', 's61', 's16', 's17', 's18', 's19', 's34'
    sXg0, sXg1, sLeP, sLeG, sGp, sGg, sLfP = 's35', 's40', 's41', 's98', 's99', 's100', 's101'
    a(f'''s_sub_u32 {sJJ}, {sJ}, 4
        s_and_b32 {sKsE}, {sJJ}, 3
        s_lshl_b32 {T0}, {sPh}, 10
        s_add_u32 {T0}, {T0}, {LL}
        v_lshlrev_b32 {t[0]}, 3, v0
        v_lshrrev_b32 {t[1]}, 2, v0
        v_lshlrev_b32 {vSeg}, 8, {t[1]}
        v_lshl_add_u32 {vSeg}, {vNq}, 4, {vSeg}''')
    common = [(f'buffer_load_dwordx2 {v(KF + 8, 2)}, {t[0]}, {WL}, {T0} offen sc1' + NT, KF + 8, True),
              (f'buffer_load_dwordx2 {v(KF + 10, 2)}, {t[0]}, {WL}, {T0} offen offset:512 sc1' + NT, KF + 10, True)]
    a('s_cmp_lt_u32 s2, 32\ns_cbranch_scc1 L_preR')
    a(f'''s_lshl3_add_u32 {T2}, {sKsE}, {sW}
        s_lshl_b32 {T2}, {T2}, 10
        s_add_u32 {T2}, {T2}, {US}''')
    gather(common + [(f'buffer_load_dwordx2 {v(S + 2 * i, 2)}, {t[0]}, {WS}, {T2} offen offset:{512 * i} sc1', S + 2 * i, False) for i in range(2)],
           sleep=cfg.fsleep)
    a(f'''v_mov_b32 {vSb0}, {v(S)}
        v_mov_b32 {vSb1}, {v(S + 2)}
        v_and_b32 {vU0}, 0xffff0000, {v(S + 1)}
        v_and_b32 {vU1}, 0xffff0000, {v(S + 3)}
        s_branch L_preF''')
    a.label('L_preR')
    a(f'''s_lshr_b32 {T1}, {sW}, 2
        s_lshl1_add_u32 {T1}, {sJ}, {T1}
        s_and_b32 {T2}, {sW}, 3
        s_lshl3_add_u32 {T3}, {sC}, {T1}
        s_lshl2_add_u32 {sXp}, {T3}, {T2}
        s_lshl_b32 {sXp}, {sXp}, {lg(PX_)}
        s_add_u32 {sXp}, {sXp}, {X1}
        s_lshl_b32 {T3}, {T3}, 5
        s_lshl_b32 {sRg}, {T2}, 11
        s_add_u32 {T3}, {T3}, {sRg}
        v_lshl_add_u32 {vOut}, {vN}, 1, {T3}
        global_load_ushort {vXr}, {vOut}, {sp(pX)}
        s_lshl_b32 {T2}, {T2}, 6
        s_lshl_b32 {sRg}, {T1}, 13
        s_add_u32 {sRg}, {sRg}, {T2}
        s_add_u32 {sRg}, {sRg}, {LD}
        s_lshl_b32 {T1}, {T1}, 10
        s_add_u32 {T1}, {T1}, {T2}
        s_add_u32 {T2}, {T1}, {LM + 2 * 8192}
        s_add_u32 {T3}, {T1}, {LM + 5 * 8192}
        v_lshlrev_b32 {t[1]}, 8, {vGrp}
        v_lshl_add_u32 {t[1]}, {vNq}, 4, {t[1]}''')
    gather(common + [ld4(S, t[1], T2, nt=True), ld4(S + 4, t[1], T3, nt=True)], sleep=cfg.fsleep)
    swap_reduce4(S, S + 4)
    a(f'''v_cvt_pk_bf16_f32 {vGb}, {v(S)}, {v(S + 4)}
        v_lshlrev_b32 {vGa}, 16, {vGb}
        v_and_b32 {vGb}, 0xffff0000, {vGb}
        v_lshlrev_b32 {vXr}, 16, {vXr}
        v_add_u32 {vSeg2}, 4096, {vSeg}
        v_cmp_gt_u32 vcc, 48, v0
        v_cndmask_b32 {vMk}, 0, 1.0, vcc
        v_cndmask_b32 {vXA}, {vSeg}, {vSeg2}, vcc''')
    a.label('L_preF')

    def red_hi(op, x):
        dpp(op, x, 'row_ror:8')
        a(f'''v_mov_b32 {t[4]}, {x}
            v_permlane16_swap_b32 {x}, {t[4]}
            {op} {x}, {x}, {t[4]}
            v_mov_b32 {t[4]}, {x}
            v_permlane32_swap_b32 {x}, {t[4]}
            {op} {x}, {x}, {t[4]}''')
    a(f'v_max_f32 {t[1]}, {v(KF + 9)}, {v(KF + 11)}')
    red_hi('v_max_f32', t[1])
    a(f'''v_sub_f32 {v(KF + 9)}, {v(KF + 9)}, {t[1]}
        v_sub_f32 {v(KF + 11)}, {v(KF + 11)}, {t[1]}
        v_sub_f32 {vM}, {vM}, {t[1]}
        v_mul_f32 {v(KF + 9)}, {f32(LOG2E)}, {v(KF + 9)}
        v_mul_f32 {v(KF + 11)}, {f32(LOG2E)}, {v(KF + 11)}
        v_mul_f32 {vM}, {f32(LOG2E)}, {vM}
        v_exp_f32 {v(KF + 9)}, {v(KF + 9)}
        v_exp_f32 {v(KF + 11)}, {v(KF + 11)}
        v_exp_f32 {vM}, {vM}
        v_mul_f32 {t[1]}, {v(KF + 8)}, {v(KF + 9)}
        v_fmac_f32 {t[1]}, {v(KF + 10)}, {v(KF + 11)}''')
    red_hi('v_add_f32', t[1])
    a(f'v_rcp_f32 {t[1]}, {t[1]}\nv_mul_f32 {vFs}, {vM}, {t[1]}')
    next_gen()
    read_local()
    assert LO == 0
    a(f'''s_lshl3_add_u32 {T0}, {sPh}, {sW}
        s_lshl_b32 {T0}, {T0}, 5
        s_add_u32 {T0}, {T0}, {sS}
        s_lshl_b32 {sLoP}, {T0}, 8
        v_and_b32 {vOpA}, 0xff, {vPub}
        v_and_b32 {t[0]}, 1, {vB2}
        v_lshl_or_b32 {vOpA}, {t[0]}, 12, {vOpA}
        v_and_b32 {t[0]}, 8, v0
        v_lshl_or_b32 {vOpA}, {t[0]}, 27, {vOpA}
        v_lshlrev_b32 {vN4}, 2, {vN}
        v_lshl_or_b32 {vXS}, {vB2}, 29, {vN4}''')
    a(f'''s_lshl3_add_u32 {T0}, {sJ}, {sW}
        s_lshl_b32 {sLoG}, {T0}, 12
        s_bfe_u32 {T1}, {T0}, 0x30001
        s_lshl3_add_u32 {T1}, {sG}, {T1}
        s_lshr_b32 {T2}, {sJ}, 1
        s_add_u32 {T2}, {T2}, {sB}
        s_lshl2_add_u32 {T1}, {T1}, {T2}
        s_and_b32 {T2}, {sW}, 1
        s_lshl1_add_u32 {T1}, {T1}, {T2}
        s_lshl_b32 {T1}, {T1}, {lg(PO_) + 2}
        s_add_u32 {sOoP}, {T1}, {OO}''')
    a(f'''s_lshl_b32 {T0}, {T0}, {lg(PO_) + 2}
        s_add_u32 {sOoG}, {T0}, {OO}
        v_lshl_add_u32 {vOA_}, {vB2}, {lg(PO_)}, {vN4}
        s_lshl_b32 {T2}, {T2}, 6
        v_lshl_add_u32 {t[1]}, {vB2}, 4, {vN}
        v_add_u32 {t[1]}, {T2}, {t[1]}
        s_lshr_b32 {T2}, {sW}, 1
        v_mov_b32 {t[2]}, {T2}
        s_lshl_b32 {T0}, {sW}, 5
        s_add_u32 {T1}, {T0}, {sJ}
        s_lshl_b32 {T1}, {T1}, 8
        s_add_u32 {sLdP}, {T1}, {LD}
        s_sub_u32 {sLfP}, {sLdP}, 1024''')
    act_pos(vActD, t[1], t[2])
    if cfg.preread:
        a(f'''s_cmp_lg_u32 {sW}, 6
            s_cbranch_scc1 L_nopre
            s_mul_i32 {T0}, {sJ}, 6144
            v_lshlrev_b32 {t[5]}, 7, v0
            s_mov_b32 exec_hi, 0xffff''')
        preread([f'buffer_load_dword {v(S + 8)}, {t[5]}, {WL}, {T0} offen sc1 '])
        a('s_mov_b64 exec, -1')
        a.label('L_nopre')
    if cfg.l2code:
        a(f'''s_cmp_lg_u32 {sW}, 7
            s_cbranch_scc1 L_nocode
            s_getpc_b64 s[20:21]''')
        a.label('L_pc')
        a(f'''s_mov_b32 s22, L_last-L_pc
            s_mov_b32 s23, 0x20000
            v_lshlrev_b32 {t[5]}, 7, v0
            buffer_load_dword {v(S + 12)}, {t[5]}, s[20:23], 0 offen''')
        a.label('L_nocode')
    if cfg.pretouch & 1:
        a(f'buffer_load_dword {v(S + 12)}, {vOA_}, {WS}, {sOoG} offen sc1')
    a('s_cmp_lt_u32 s2, 32\ns_cbranch_scc1 L_predone')
    a(f'''s_lshl_b32 {T0}, {sW}, {lg(PX_) + 5}
        s_add_u32 {sXg0}, {T0}, {X1}
        s_lshl3_add_u32 {T0}, {sKsE}, {sW}
        s_lshl_b32 {T0}, {T0}, {lg(PX_) + 3}
        s_add_u32 {sXg1}, {T0}, {X1}
        v_lshrrev_b32 {t[1]}, 2, v0
        v_lshlrev_b32 {vSeg2}, {lg(PX_)}, {t[1]}
        v_lshl_add_u32 {vSeg2}, {vNq}, 4, {vSeg2}
        v_lshl_add_u32 {vXA}, {vB2}, {lg(PX_)}, {vN4}
        s_lshl_b32 {T0}, {sW}, 5
        v_add_u32 {t[1]}, {T0}, {vN}''')
    act_pos(vEP0, t[1], vB2)
    a(f'''v_lshlrev_b32 {vStR}, 6, {vB2}
        v_lshl_add_u32 {vStW}, {vW4}, 1, {vStR}
        v_lshrrev_b32 {t[0]}, 5, v0
        v_lshl_add_u32 {vStW}, {t[0]}, 2, {vStW}
        s_lshr_b32 {T0}, {sW}, 2
        s_lshl_b32 {T1}, {T0}, 7
        v_xor_b32 {vGA0}, {T1}, {vTr}
        s_lshl_b32 {T1}, {T0}, 15
        s_add_u32 {T1}, {T1}, {slot(N_G)}
        v_add_u32 {vGA0}, {T1}, {vGA0}
        v_xor_b32 {vGA1}, 0x80, {vGA0}
        v_add_u32 {vFTr}, {slot(N_F)}, {vTr}''')
    assert LE == 0
    a(f'''s_lshl3_add_u32 {T0}, {sJJ}, {sW}
        s_lshl_b32 {sLeP}, {T0}, 8
        s_lshl_b32 {sGg}, {T0}, {lg(PG_) + 2}
        s_lshr_b32 {T0}, {sJJ}, 2
        s_lshl_b32 {T1}, {T0}, 5
        s_add_u32 {T1}, {T1}, {sKsE}
        s_lshl1_add_u32 {T1}, {T1}, {sW}
        s_lshl_b32 {sLeG}, {T1}, 7
        s_lshl3_add_u32 {T0}, {T0}, {sC}
        s_lshl2_add_u32 {T0}, {T0}, {sKsE}
        s_lshl1_add_u32 {T0}, {T0}, {sW}
        s_lshl_b32 {sGp}, {T0}, {lg(PG_) + 1}
        v_lshlrev_b32 {vFA}, 11, {vGrp}
        v_bfe_u32 {t[0]}, v0, 3, 1
        v_lshl_add_u32 {vFA}, {t[0]}, 10, {vFA}
        v_lshl_add_u32 {vFA}, {vFl}, 2, {vFA}
        v_lshl_add_u32 {vGA_}, {vB2}, {lg(PG_)}, {vN4}
        v_lshl_or_b32 {vGS}, {t[0]}, 30, {vGA_}''')
    a(f'''v_lshrrev_b32 {vHint}, 1, v0
        v_lshlrev_b32 {vHint}, 4, {vHint}
        v_lshl_add_u32 {vHint}, {vNq}, 2, {vHint}
        s_mov_b32 {sLoG}, {LX}''')
    if cfg.hint:
        a(f'buffer_load_dword {v(S + 13)}, {vHint}, {WL}, {sLoG} offen sc1')
    if cfg.pretouch & 2:
        a(f'buffer_load_dword {v(S + 13)}, {vXA}, {WS}, {sXg1} offen sc1')
        a(f'buffer_load_dword {v(S + 14)}, {vXA}, {WS}, {sXg1} offen offset:{4 * PX_} sc1')
    if cfg.pretouch & 4:
        a(f'buffer_load_dword {v(S + 15)}, {vGA_}, {WS}, {sGg} offen sc1')
    a.label('L_predone')
    stamp('pre_done')
    v_loop(N_G)
    if cfg.sync:
        a(f's_add_u32 {T0}, s64, 4500\ns_or_b32 {T0}, {T0}, 0xfff')
        a.label('L_sync')
        a(f'''s_memrealtime s[62:63]
            s_waitcnt lgkmcnt(0)
            s_cmp_le_u32 s62, {T0}
            s_cbranch_scc1 L_sync
            s_mov_b32 s64, s62''')
    stamp('v_done')
    for r in range(4):
        a(f'v_mul_f32 {v(OA + r)}, {vFs}, {v(OA + r)}')
    publish4(OA, sLoP, vOpA)
    if cfg.hold:
        set_freed(N_G + 1)
    a('s_cmp_ge_u32 s2, 32\ns_cbranch_scc1 L_noo')
    if cfg.ackwait & 1:
        a('s_waitcnt vmcnt(0)')
    gather([ld4(KF + 4 * i, vL16, sLoG, 1024 * i) for i in range(4)])
    stamp('e3a')
    tree(KF, (8, 4))
    swap_reduce4(KF)
    publish16(v(KF), vOA_, sOoP)
    stamp('O_pub')
    if cfg.ackwait & 2:
        a('s_waitcnt vmcnt(0)')
    a('s_branch L_D')
    a.label('L_noo')
    if cfg.e3bat:
        wait_landed(cfg.e3bat)
    a.label('L_D')
    stamp('e3b_go')
    gemv128(7, ACT_D, vOA_, sOoG, S, sLdP, 'e3b', sleep=cfg.tsleep, pos=vActD, pipe=cfg.pipe)
    stamp('D_pub')
    a('s_cmp_ge_u32 s2, 32\ns_cbranch_scc1 L_E')
    a(f's_lshr_b32 {T0}, {sLoG}, 8\ns_add_u32 {T0}, {T0}, {LX}')
    if cfg.ackwait & 1:
        a('s_waitcnt vmcnt(0)')
    gather([ld4(KF, vSeg, sRg), ld4(KF + 4, vSeg2, sRg)])
    stamp('e4a')

    def hint_store():
        a('s_mov_b64 exec, 15')
        store_local(f'buffer_store_dword {vTagQ}, {vL4}, {WL}, {T0} offen')
        a('s_mov_b64 exec, -1')
    if cfg.hint & 1:
        hint_store()
    tree(KF, (4,))
    swap_reduce4(KF)
    dpp('v_add_f32', v(KF), 'row_ror:8')
    dpp('v_add_f32', v(KF), 'row_ror:4')
    a(f'v_fmac_f32 {vXr}, {vGa}, {v(KF)}')
    publish16(vXr, vXS, sXp)
    if cfg.hint & 2:
        hint_store()
    stamp('R_pub')
    a(f'v_and_b32 {vXr}, 0xffff0000, {vXr}')
    next_gen()
    gather([ld4(KF, vSeg, sRg), ld4(KF + 4, vXA, sRg)], light=cfg.rlight if cfg.rlight >= 0 else None)
    stamp('e5')
    for i in range(4):
        a(f'v_fmac_f32 {v(KF + i)}, {vMk}, {v(KF + 4 + i)}')
    swap_reduce4(KF)
    dpp('v_add_f32', v(KF), 'row_ror:8')
    dpp('v_add_f32', v(KF), 'row_ror:4')
    a(f'''v_fmac_f32 {vXr}, {vGb}, {v(KF)}
        v_cvt_pk_bf16_f32 {vXr}, {vXr}, {vXr}
        s_mov_b32 exec_lo, 0x000f000f
        s_mov_b32 exec_hi, 0x000f000f
        global_store_short {vOut}, {vXr}, {sp(pOUT)}''')
    stamp('out')
    a('s_branch L_fin')
    a.label('L_E')
    if cfg.hold & 6:
        set_freed(N_G + 2)
    a(f'''s_lshr_b32 {T0}, {sW}, 2
        s_lshl2_add_u32 {T0}, {T0}, {N_U}''')
    wait_landed(T0)
    tr_reads(vGA0, [8192 * j for j in range(4)], KF)
    tr_reads(vGA1, [8192 * j for j in range(4)], KF + 16)
    if cfg.e4bat:
        wait_landed(cfg.e4bat)
    if cfg.hint:
        if cfg.hint & 4:
            a(f's_cmp_lg_u32 {sW}, 0\ns_cbranch_scc1 L_nohint')
        gather([(f'buffer_load_dword {v(S)}, {vHint}, {WL}, {sLoG} offen sc1', S, False)], clean=False, sleep=cfg.hsleep)
        if cfg.hint & 4:
            a.label('L_nohint')
            csync(8)
    stamp('e4b_go')
    x0, x1 = S + 8, S + 9
    x4 = lambda r, off: (f'buffer_load_dwordx4 {v(r, 4)}, {vSeg2}, {WS}, {sXg0} offen offset:{off} sc1', r, False)
    gather([ld1(x0, vXA, sXg1), ld1(x1, vXA, sXg1, 4 * PX_), x4(S, 0), x4(S + 4, 16 * PX_)], clean=False,
           light=cfg.tsleep if cfg.xlight and not cfg.hint else None)
    stamp('e4b')
    if cfg.hold & 8:
        set_freed(N_G + 3)
    sm, sq = t[0], t[1]
    for i in range(10):
        a(f'v_and_b32 {v(S + i)}, 0xffff0000, {v(S + i)}')
    a(f'v_add_f32 {sm}, {v(S)}, {v(S + 1)}\nv_mul_f32 {sq}, {v(S)}, {v(S)}\nv_fmac_f32 {sq}, {v(S + 1)}, {v(S + 1)}')
    for i in range(2, 8):
        a(f'v_add_f32 {sm}, {sm}, {v(S + i)}\nv_fmac_f32 {sq}, {v(S + i)}, {v(S + i)}')
    a(f'''v_permlane32_swap_b32 {sm}, {sq}
        v_add_f32 {sm}, {sm}, {sq}
        v_mov_b32 {sq}, {sm}
        v_permlane16_swap_b32 {sm}, {sq}
        v_add_f32 {sm}, {sm}, {sq}''')
    dpp('v_add_f32', sm, 'quad_perm:[1,0,3,2]')
    dpp('v_add_f32', sm, 'quad_perm:[2,3,0,1]')
    a(f'ds_write_b32 {vStW}, {sm} offset:{ST2}')
    csync(9, '\n'.join(f'ds_read_b128 {v(S + 12 + 4 * i, 4)}, {vStR} offset:{ST2 + 16 * i}' for i in range(4)))
    stamp('E_cs1')
    tree(S + 12, (8, 4, 2))
    sm, sq = v(S + 12), v(S + 13)
    a(f'''v_mul_f32 {sm}, {f32(1 / 1024)}, {sm}
        v_mul_f32 {sq}, {f32(1 / 1024)}, {sq}
        v_fma_f32 {sq}, -{sm}, {sm}, {sq}
        v_max_f32 {sq}, 0, {sq}
        v_add_f32 {sq}, {f32(1e-5)}, {sq}
        v_rsq_f32 {sq}, {sq}
        v_sub_f32 {v(x0)}, {v(x0)}, {sm}
        v_sub_f32 {v(x1)}, {v(x1)}, {sm}
        v_mul_f32 {v(x0)}, {v(x0)}, {vU0}
        v_mul_f32 {v(x1)}, {v(x1)}, {vU1}
        v_fma_f32 {v(x0)}, {v(x0)}, {sq}, {vSb0}
        v_fma_f32 {v(x1)}, {v(x1)}, {sq}, {vSb1}
        v_cvt_pk_bf16_f32 {t[0]}, {v(x0)}, {v(x1)}
        ds_write_b16 {vEP0}, {t[0]} offset:{ACT_E}
        ds_write_b16_d16_hi {vEP0}, {t[0]} offset:{ACT_E + 8}''')
    csync(10, act_reads(ACT_E, 8, S))
    stamp('E_cs2')
    for j in range(8):
        mfma(OA, KF + 4 * j, S + 4 * j, j == 0)
    next_gen()
    publish4(OA, sLeP)
    stamp('E_pub')
    a(f's_cmp_ge_u32 {sW}, 2\ns_cbranch_scc1 L_nog')
    if cfg.ackwait & 1:
        a('s_waitcnt vmcnt(0)')
    stamp('E_ack')
    gather([ld4(KF, vFA, sLeG)])
    stamp('e4c')
    swap_reduce4(KF)
    x, u = v(KF), v(KF + 1)
    c1 = -2.0 * 0.7978845608028654 * LOG2E
    a(f'''v_mul_f32 {t[1]}, {x}, {x}
        v_mov_b32 {t[2]}, {f32(c1)}
        v_fmac_f32 {t[2]}, {f32(c1 * 0.044715)}, {t[1]}
        v_mul_f32_dpp {u}, {x}, {x} row_ror:8 row_mask:0xf bank_mask:0xf
        v_mul_f32 {t[2]}, {t[2]}, {x}
        v_exp_f32 {t[2]}, {t[2]}
        v_add_f32 {t[2]}, 1.0, {t[2]}
        v_rcp_f32 {t[2]}, {t[2]}
        v_mul_f32 {x}, {u}, {t[2]}''')
    publish16(x, vGS, sGp)
    stamp('G_pub')
    if cfg.ackwait & 4:
        a('s_waitcnt vmcnt(0)')
    a.label('L_nog')
    wait_landed(N_END)
    tr_reads(vFTr, [8192 * j for j in range(4)], WF)
    if cfg.ackwait & 4:
        csync(11)
    stamp('e4d_go')
    gemv128(12, ACT_F, vGA_, sGg, S, sLfP, 'e4d')
    stamp('F_pub')
    a.label('L_fin')
    if cfg.probe:
        i = stamp_names.index(cfg.probe)
        if cfg.probewg >= 0:
            a(f's_cmp_lg_u32 s2, {cfg.probewg}\ns_cbranch_scc1 L_noprobe')
        a(f'''s_sub_u32 {T0}, s{64 + i}, s64
            s_mul_i32 {T0}, {T0}, 10
            s_add_u32 {T0}, {T0}, 10000''')
        a.label('L_probe')
        a(f'''s_memrealtime s[62:63]
            s_waitcnt lgkmcnt(0)
            s_sub_u32 {T1}, s62, s64
            s_cmp_lt_u32 {T1}, {T0}
            s_cbranch_scc1 L_probe''')
        a.label('L_noprobe')
    if DBG:
        a(f's_cmp_lg_u32 {sW}, 0\ns_cbranch_scc1 L_end\ns_mov_b32 s95, {sLoc}\ns_lshl_b32 {T1}, s2, 1')
        dump_stamps(T1)
    a.label('L_end')
    a('s_endpgm')
    for o in ool:
        a(o)
    a.label('L_last')
    a('s_endpgm')

    body = a.finish()
    print('code bytes', a.code_bytes, file=sys.stderr)
    hdr = open('cdna_kernels/' + NAME + '.s.ref').read().split('; Override launch')[0]
    txt = hdr + f'''; Persistent fused kernel: one workgroup per CU: 1 LDS-DMA loader wave, 8 compute waves, 1 control wave.
; @launch grid=(256,1,1) block=(640,1,1) lds={LDS_BYTES}
.amdgcn_target "amdgcn-amd-amdhsa--gfx950"
.text
.globl {NAME}_kernel
.p2align 8
.type {NAME}_kernel,@function
{NAME}_kernel:
{body}.section .rodata,"a"
.p2align 6
.amdhsa_kernel {NAME}_kernel
  .amdhsa_next_free_vgpr 160
  .amdhsa_next_free_sgpr 102
  .amdhsa_accum_offset 160
  .amdhsa_group_segment_fixed_size 0
  .amdhsa_kernarg_size 112
  .amdhsa_user_sgpr_count 2
  .amdhsa_user_sgpr_kernarg_segment_ptr 1
  .amdhsa_system_sgpr_workgroup_id_x 1
.end_amdhsa_kernel
'''
    return txt, dict(consumer=list(stamp_names), loader=loader_names)


def parser():
    p = argparse.ArgumentParser()
    p.add_argument('-o', dest='out', default='out.s')
    for k, d in dict(debug=0, wmain=22, wtail=30, wslow=14, wfast=30, fsleep=8, lsleep=2, tsleep=0, e1at=9, e1lead=4, e2at=24, e2lead=2,
                     preat=20, nocomm=0, trace=0, ackwait=7, spec=0, e4bat=0, sync=0, ctl=1, ctl0=20, ctlstep=4, ctllo=4,
                     ctlhi=28, mode0a=0, mode0n=1, hello=24, preread=0, pretouch=1, xlight=1, early=1, hold=5, pipe=0, hsleep=0, hint=5, l2code=1, e3bat=0, rlight=-1, po=PO, px=PX, pg=PG,
                     probewg=40, timeout=1 << 20).items():
        p.add_argument('--' + k, type=int, default=d)
    p.add_argument('--probe', default='')
    p.add_argument('--only', default='')
    p.add_argument('--prent', default='')
    return p


if __name__ == '__main__':
    cfg = parser().parse_args()
    txt, names = build(cfg)
    open(cfg.out, 'w').write(txt)
    import json
    json.dump(names, open(cfg.out + '.json', 'w'))
```

```python
import sys, struct, argparse
from asmlib import Asm

NAME = 'adaLN_cond__gqa_block_cached__geglu_ffn__decode'


def f32(x):
    return '0x%08x' % struct.unpack('<I', struct.pack('<f', x))[0]


LOG2E = 1.4426950408889634

PO, PX, PG = 64, 64, 64
GG = 0
HH = GG + 224 * 4 * 128
US = HH + 16384
QQ = US + 32768
OO = QQ + 65536
X1 = OO + 32 * 32 * 128
CTR = X1 + 256 * 128
GEND = CTR + 8 * 256
LOC = 512 << 10
LSTRIDE = 256 << 10
LQ = 0
LO = 0
LE = 0
LD = 128 << 10
LF = LD
LM = 192 << 10
LL = 240 << 10
HELLO = 244 << 10
LX = 245 << 10
LG = 246 << 10
STAMPS = 8 << 20
TAGK, TAGC = 0x3525, 0x4B13

LANDED = 0
FREED = 256
MODE = 288
LOCAL = 292
FLAG = 320
ST1 = 384
ST2 = 512
MX = 768
LS = 1024
ACT_B = 2048
ACT_D = 3072
ACT_F = 4096
QB = 5120
ACT_E = 8192
ACT_A = ACT_E
PB = 16384
RING0 = 32768
LDS_BYTES = 163840

N_A, N_Q, N_K, N_O, N_V, N_G, N_U, N_F, N_END = 0, 8, 12, 44, 48, 80, 84, 88, 92


def slot(n):
    return RING0 + (n & 15) * 8192


def build(cfg):
    a = Asm()
    DBG = cfg.debug
    PO_, PX_, PG_ = cfg.po, cfg.px, cfg.pg
    lg = lambda x: x.bit_length() - 1
    NT = '' if cfg.early else ' nt'

    pX, pK, pV, pWQ, pWO, pG, pU, pD, pC, pWM, pOUT, pDBG, pWS = 16, 18, 20, 22, 24, 28, 30, 32, 34, 36, 38, 40, 42
    sp = lambda p: f's[{p}:{p + 1}]'
    sW, sTO = 's3', 's48'
    sC, sJ = 's4', 's5'
    T0, T1, T2, T3 = 's49', 's50', 's51', 's52'
    stamp_names = []
    ool = []

    def stamp(name):
        if not DBG or (cfg.only and name not in cfg.only.split(',') and name != 'entry'):
            return
        if name not in stamp_names:
            stamp_names.append(name)
        i = stamp_names.index(name)
        assert i < 32
        a(f's_memrealtime s[62:63]\ns_waitcnt lgkmcnt(0)\ns_mov_b32 s{64 + i}, s62')

    def dump_stamps(row):
        a('s_mov_b64 exec, -1')
        for i in range(32):
            a(f'v_writelane_b32 v8, s{64 + i}, {i}')
        a(f'''s_lshl_b32 {T0}, {row}, 7
            s_add_u32 {T0}, {T0}, {STAMPS}
            v_lshlrev_b32 v9, 2, v0
            v_add_u32 v9, {T0}, v9
            s_mov_b32 exec_hi, 0
            global_store_dword v9, v8, {sp(pWS)}''')

    def timeout():
        a(f's_sub_u32 {sTO}, {sTO}, 1\ns_cbranch_scc1 L_end')

    a.label('L_first')
    if DBG:
        a('s_memrealtime s[96:97]')
    a(f'''s_cmp_ge_u32 s2, 256
        s_cbranch_scc1 L_end
        s_load_dwordx16 s[16:31], s[0:1], 0
        s_load_dwordx8 s[32:39], s[0:1], 64
        s_load_dwordx4 s[40:43], s[0:1], 96
        s_getpc_b64 s[46:47]''')
    a.label('L_pc0')
    if cfg.l2code & 2:
        a(f'''v_lshlrev_b32 v1, 5, v0
            v_min_u32 v1, L_last-L_pc0, v1
            global_load_dword v157, v1, s[46:47]''')
    a(f'''v_readfirstlane_b32 {sW}, v0
        s_and_b32 {sC}, s2, 7
        s_lshr_b32 {sJ}, s2, 3
        s_lshr_b32 {sW}, {sW}, 6
        s_cbranch_scc1 L_notloader''')

    sOff, sStep, sJump, sEnd, sN, sLds, sPub = 's12', 's13', 's14', 's15', 's44', 's45', 's53'
    vO0, vO1, vF, vFa, vL4, vR, vC0, vC1, vT, vMd = 'v1', 'v2', 'v3', 'v4', 'v5', 'v6', 'v7', 'v10', 'v11', 'v14'
    a(f'''s_setprio 3
        s_lshl_b32 s57, {sC}, 8
        s_and_b32 {T0}, {sJ}, 7
        s_lshl_b32 {T0}, {T0}, 20
        s_lshr_b32 {T1}, {sJ}, 3
        s_lshl2_add_u32 {T1}, {sC}, {T1}
        s_lshl_b32 {T1}, {T1}, 8
        s_add_u32 s56, {T0}, {T1}
        s_and_b32 {T0}, {sJ}, 3
        s_mulk_i32 {T0}, 0x600
        s_lshr_b32 {T1}, {sJ}, 2
        s_add_u32 {T0}, {T0}, {T1}
        s_lshl_b32 {T0}, {T0}, 11
        s_add_u32 {T0}, {T0}, s57
        s_lshl_b32 s11, 1, 17
        s_cmp_ge_u32 {sJ}, 24
        s_cselect_b32 {sOff}, s56, {T0}
        s_cselect_b32 {sN}, {N_Q + RING0 // 8192}, {N_A + RING0 // 8192}
        s_cselect_b32 {T1}, 8, 12
        s_lshl_b32 s10, {T1}, 20
        s_lshl_b32 {sStep}, {T1}, 12
        s_lshl_b32 {T1}, {T1}, 10
        s_lshl_b32 m0, {sN}, 13
        v_lshrrev_b32 {vR}, 4, v0
        v_and_b32 {vC0}, 15, v0
        v_lshlrev_b32 {vT}, 1, {vR}
        v_xor_b32 {vC0}, {vC0}, {vT}
        v_lshlrev_b32 {vC0}, 4, {vC0}
        v_mad_u32_u24 {vO0}, {vR}, {T1}, {vC0}
        v_xor_b32 {vO1}, 0x80, {vO0}
        s_mov_b32 {T0}, {cfg.first - 1}
        s_cmp_ge_u32 {sJ}, 24
        s_waitcnt lgkmcnt(0)
        s_cselect_b64 s[8:9], {sp(pWQ)}, {sp(pWM)}''')
    stamp('ld_args')
    a.label('L_ld_0')
    a(f'''buffer_load_dwordx4 {vO0}, s[8:11], {sOff} offen nt lds
        s_addk_i32 m0, 0x400
        s_add_u32 {sOff}, {sOff}, {sStep}
        buffer_load_dwordx4 {vO1}, s[8:11], {sOff} offen nt lds
        s_addk_i32 m0, 0x400
        s_add_u32 {sOff}, {sOff}, {sStep}
        s_sub_u32 {T0}, {T0}, 1
        s_cbranch_scc0 L_ld_0''')
    stamp('ld_first')
    if DBG:
        for i in range(len(stamp_names), 32):
            a(f's_mov_b32 s{64 + i}, 0')
    assert cfg.first % 4 == 0
    a(f'''s_mov_b32 s11, 0x20000
        s_sub_u32 {sN}, {sN}, {RING0 // 8192 - cfg.first // 4}
        s_mov_b32 {sTO}, {cfg.timeout}
        s_mov_b32 {sPub}, 0
        s_mov_b32 {sJump}, {sStep}
        s_cmp_ge_u32 {sJ}, 24
        s_cselect_b32 {T2}, {cfg.mode0n}, {cfg.mode0a}
        v_xor_b32 {vC1}, 0x80, {vC0}''')
    if cfg.noswz:
        a(f'v_and_b32 {vC0}, 15, v0\nv_lshlrev_b32 {vC0}, 4, {vC0}\nv_mov_b32 {vC1}, {vC0}')
    a(f'''v_lshlrev_b32 {vL4}, 2, v0
        v_mov_b32 {vF}, 0
        v_mov_b32 {vMd}, {T2}
        v_and_b32 {vFa}, 28, {vL4}
        ds_write_b32 {vL4}, {vF} offset:{LANDED}
        ds_write_b32 {vL4}, {vF} offset:{FREED}
        ds_write_b32 {vF}, {vMd} offset:{MODE}''')

    def seg(ptr, nbytes, pitch, jump=None, fold=False):
        a(f'''s_mov_b32 s8, s{ptr}
            s_mov_b32 s9, s{ptr + 1}
            s_mov_b32 s10, {nbytes}
            s_mov_b32 {sStep}, {4 * pitch}
            s_mov_b32 {sJump}, {jump if jump is not None else 4 * pitch}
            v_mul_u32_u24 {vT}, {pitch}, {vR}''')
        if not fold:
            a(f'v_add_u32 {vO0}, {vT}, {vC0}\nv_add_u32 {vO1}, {vT}, {vC1}')
        else:
            for vO, vC in ((vO0, vC0), (vO1, vC1)):
                a(f'''v_and_b32 v12, 0x80, {vC}
                    v_mul_u32_u24 v12, {pitch}, v12
                    v_and_b32 v13, 0x70, {vC}
                    v_add3_u32 {vO}, {vT}, v12, v13''')

    def run(end, which):
        a(f's_mov_b32 {sEnd}, {end}\ns_call_b64 s[46:47], L_loop{which}')

    def drain():
        for k in (3, 2, 1, 0):
            a(f'''s_sub_u32 {T0}, {sN}, {k}
                s_max_i32 {sPub}, {sPub}, {T0}
                v_mov_b32 {vT}, {sPub}
                s_waitcnt vmcnt({8 * k})
                ds_write_b32 {vL4}, {vT} offset:{LANDED}''')

    def hold(n):
        drain()
        L = a.new('L_hold')
        a.label(L)
        a(f'ds_read_b32 {vF}, {vFa} offset:{FREED}')
        timeout()
        a(f'''s_waitcnt lgkmcnt(0)
            v_cmp_gt_i32 vcc, {n}, {vF}
            s_cbranch_vccnz {L}''')

    a('s_waitcnt lgkmcnt(0)\ns_barrier\ns_cbranch_scc1 L_ld_q')
    run(N_Q, 'M')
    a(f's_mov_b32 {sOff}, s56')
    seg(pWQ, 1024 * 8192, 8192)
    a.label('L_ld_q')
    run(N_K, 'M')
    stamp('ld_q_issued')
    a(f'''s_lshr_b32 {T0}, {sJ}, 4
        s_lshl1_add_u32 {T0}, {sC}, {T0}
        s_and_b32 {T1}, {T0}, 3
        s_lshr_b32 {T0}, {T0}, 2
        s_lshl2_add_u32 {T0}, {T1}, {T0}
        s_lshl_b32 {T0}, {T0}, 22
        s_and_b32 {T1}, {sJ}, 15
        s_lshl_b32 {T1}, {T1}, 18
        s_add_u32 s54, {T0}, {T1}
        s_mov_b32 {sOff}, s54''')
    seg(pK, 1 << 26, 256)
    run(N_O, 'M')
    stamp('ld_k_issued')

    def o_seg():
        a(f'''s_lshr_b32 {T1}, {sJ}, 3
            s_lshl_b32 {T1}, {T1}, 21
            s_and_b32 {T0}, {sJ}, 7
            s_lshl_b32 {T0}, {T0}, 15
            s_add_u32 {T0}, {T0}, {T1}
            s_add_u32 {sOff}, {T0}, s57''')
        seg(pWO, 4096 * 2048, 2048, jump=(128 - 12) * 2048)
    if cfg.olate:
        a('s_cmp_lt_u32 s2, 224\ns_cbranch_scc1 L_ld_v')
    o_seg()
    run(N_V, 'M')
    a.label('L_ld_v')
    a(f's_mov_b32 {sOff}, s54')
    seg(pV, 1 << 26, 256)
    a(f's_add_u32 {sEnd}, {sN}, 32\ns_call_b64 s[46:47], L_loopM')
    stamp('ld_v_issued')
    a('s_cmp_ge_u32 s2, 224\ns_cbranch_scc1 L_ld_drain')
    if cfg.olate:
        o_seg()
        if cfg.h0:
            hold(N_G + 1)
        run(N_G, 'T')
    a(f'''s_mov_b32 s55, {sJ}
        s_and_b32 {T0}, s55, 3
        s_mul_i32 {T0}, {T0}, {256 * 7168}
        s_lshr_b32 {T1}, s55, 2
        s_lshl3_add_u32 {T1}, {T1}, {sC}
        s_lshl_b32 {T1}, {T1}, 7
        s_add_u32 s54, {T0}, {T1}
        s_mov_b32 {sOff}, s54''')
    seg(pG, 1024 * 7168, 7168, fold=True)
    holds = {}
    for n, step in ((cfg.h1, 1), (cfg.h2, 2), (cfg.h3, 3)):
        if n:
            holds[n] = step

    def run_tail(n0, n1):
        for n in range(n0, n1):
            if n in holds:
                if n > n0:
                    run(n, 'T')
                hold(N_G + holds[n])
        run(n1, 'T')
    run_tail(N_G, N_U)
    a(f's_mov_b32 {sOff}, s54\ns_mov_b32 s8, s{pU}\ns_mov_b32 s9, s{pU + 1}')
    run_tail(N_U, N_F)
    stamp('ld_u_issued')
    a(f's_lshl_b32 {T0}, s55, 18\ns_add_u32 {sOff}, {T0}, s57')
    seg(pD, 3584 * 2048, 2048)
    run_tail(N_F, N_END)
    a.label('L_ld_drain')
    drain()
    stamp('ld_done')
    if DBG:
        a(f's_lshl_b32 {T1}, s2, 1\ns_add_u32 {T1}, {T1}, 1')
        a(f'''s_lshl_b32 {T0}, s2, 9
            s_add_u32 {T0}, {T0}, {STAMPS + (1 << 20)}
            v_add_u32 v9, {T0}, {vL4}
            global_store_dword v9, v20, {sp(pWS)}
            global_store_dword v9, v21, {sp(pWS)} offset:256''')
        dump_stamps(T1)
    loader_names = list(stamp_names)
    a('s_endpgm')

    def loader_loop(which, Ws):
        def head():
            a.label(f'L_loop{which}')
            a(f'''s_waitcnt lgkmcnt(0)
                s_sub_i32 {T0}, {sN}, 16
                v_cmp_ge_i32 vcc, {T0}, {vF}
                s_and_b32 {sLds}, {sN}, 15
                s_lshl_b32 {sLds}, {sLds}, 13
                s_cbranch_vccnz L_stall{which}''')
            a.label(f'L_go{which}')
            if DBG and cfg.trace:
                a(f'''s_memrealtime s[62:63]
                    s_mov_b32 m0, {sN}
                    s_waitcnt lgkmcnt(0)
                    s_cmp_ge_u32 {sN}, 64
                    s_cbranch_scc1 L_tr{which}
                    v_writelane_b32 v20, s62, m0''')
                a.label(f'L_tr{which}')
                a('v_writelane_b32 v21, s62, m0')
            if len(Ws) > 1:
                a(f'v_readfirstlane_b32 {T1}, {vMd}')
                for m in (0, 2):
                    a(f's_cmp_eq_u32 {T1}, {m}\ns_cbranch_scc1 L_body{which}{m}')
        if len(Ws) == 1:
            head()
        for m, W in enumerate(Ws):
            assert W % 2 == 0 and W <= 32
            a.label(f'L_body{which}{m}')
            for o in range(8):
                a(f's_add_u32 m0, {sLds}, {RING0 + o * 1024}')
                if o == 0:
                    a(f'ds_read_b32 {vF}, {vFa} offset:{FREED}')
                else:
                    a(f's_add_u32 {sOff}, {sOff}, {sJump if o == 4 else sStep}')
                a(f'buffer_load_dwordx4 {vO1 if o & 1 else vO0}, s[8:11], {sOff} offen nt lds')
                if o == 7 and len(Ws) > 1:
                    a(f'ds_read_b32 {vMd}, {vFa} offset:{MODE}')
                if o & 1:
                    pub = (o + 3 - W) % 8 == 0
                    if pub:
                        a(f'''s_add_i32 {T0}, {sN}, {(o + 3 - W) // 8}
                            s_max_i32 {sPub}, {sPub}, {T0}
                            v_mov_b32 {vT}, {sPub}''')
                    a(f's_waitcnt vmcnt({W - 2})')
                    if pub:
                        a(f'ds_write_b32 {vL4}, {vT} offset:{LANDED}')
            a(f'''s_add_u32 {sOff}, {sOff}, {sJump}
                s_add_u32 {sN}, {sN}, 1''')
            if m == 0 and len(Ws) > 1:
                a(f's_cmp_ge_u32 {sN}, {sEnd}\ns_cbranch_scc1 L_ret{which}')
                head()
            else:
                a(f's_cmp_lt_u32 {sN}, {sEnd}\ns_cbranch_scc1 L_loop{which}')
                if m == 1:
                    a.label(f'L_ret{which}')
                a('s_setpc_b64 s[46:47]')
        a.label(f'L_stall{which}')
        a(f'ds_read_b32 {vF}, {vFa} offset:{FREED}')
        timeout()
        a(f'''s_waitcnt lgkmcnt(0)
            v_cmp_ge_i32 vcc, {T0}, {vF}
            s_cbranch_vccnz L_stall{which}
            s_branch L_go{which}''')

    loader_loop('M', [cfg.wmain, cfg.wslow, cfg.wfast])
    loader_loop('T', [cfg.wtail])

    sTag = 's6'
    WS, WL = 's[8:11]', 's[12:15]'
    a.label('L_notloader')
    assert GG == 0
    a(f'''v_and_b32 v0, 63, v0
        s_mov_b32 {sTO}, {cfg.timeout}
        s_lshl_b32 {T0}, {sC}, {lg(LSTRIDE)}
        s_add_u32 {T0}, {T0}, {LOC}
        s_mov_b32 s10, {GEND}
        s_mov_b32 s11, 0x20000
        s_mov_b32 s14, {LSTRIDE}
        s_mov_b32 s15, 0x20000
        s_waitcnt lgkmcnt(0)
        s_load_dword {sTag}, {sp(pWS)}, 0
        s_mov_b32 s8, s{pWS}
        s_mov_b32 s9, s{pWS + 1}
        s_add_u32 s12, s{pWS}, {T0}
        s_addc_u32 s13, s{pWS + 1}, 0
        s_cmp_lg_u32 {sW}, 9
        s_cbranch_scc1 L_consumer''')

    a(f'''v_and_b32 v1, 7, v0
        v_lshlrev_b32 v1, 8, v1
        s_mov_b32 {T0}, {CTR}
        buffer_load_dword v10, v1, {WS}, {T0} offen sc1''')
    if cfg.early:
        a(f'''s_lshl_b32 {T2}, {sJ}, 13
            v_lshlrev_b32 v2, 7, v0
            buffer_load_dword v11, v2, {WL}, {T2} offen sc1 nt
            buffer_load_dword v11, v2, {WL}, {T2} offen sc1''')
    a(f'''        s_getreg_b32 {T1}, hwreg(HW_REG_XCC_ID, 0, 8)
        s_lshl_b32 {T1}, {T1}, 16
        v_and_b32 v2, 31, v0
        v_lshlrev_b32 v2, 4, v2
        s_lshl_b32 {T2}, {sJ}, 4
        v_mov_b32 v3, {T2}
        s_mov_b32 {T3}, {HELLO}
        s_add_u32 s60, s{pWS}, {CTR}
        s_addc_u32 s61, s{pWS + 1}, 0
        v_mov_b32 v1, 0
        s_waitcnt lgkmcnt(0)
        s_add_u32 {sTag}, {sTag}, {TAGK}
        s_and_b32 {sTag}, {sTag}, 0xffff
        s_or_b32 {T1}, {T1}, {sTag}
        v_mov_b32 v4, {T1}
        v_add_u32 v5, {TAGC}, v4
        v_add_u32 v6, {TAGC}, v5
        v_add_u32 v7, {TAGC}, v6
        s_mov_b64 exec, 1
        buffer_store_dwordx4 v[4:7], v3, {WL}, {T3} offen
        s_mov_b64 exec, -1
        s_barrier
        s_mov_b32 s54, {cfg.hello}''')
    a.label('L_hello')
    a(f'''buffer_load_dwordx4 v[12:15], v2, {WL}, {T3} offen sc1 nt
        s_sub_u32 s54, s54, 1
        s_cbranch_scc1 L_hello2
        s_waitcnt vmcnt(0)
        v_xor_b32 v12, v12, v4
        v_xor_b32 v13, v13, v5
        v_xor_b32 v14, v14, v6
        v_xor_b32 v15, v15, v7
        v_or_b32 v12, v12, v13
        v_or3_b32 v12, v12, v14, v15
        v_cmp_ne_u32 vcc, 0, v12
        s_cbranch_vccnz L_hello
        v_mov_b32 v2, 1
        ds_write_b32 v1, v2 offset:{LOCAL}''')
    a.label('L_hello2')
    a(f'''s_waitcnt vmcnt(0)
        s_cmp_ge_u32 s2, 224
        s_cselect_b32 s54, {cfg.ctl0 + cfg.rbias}, {cfg.ctl0}
        s_add_u32 s58, s54, {cfg.ctlend - cfg.ctl0}
        s_mov_b32 s55, 0
        s_mov_b32 s56, {sJ}
        s_lshr_b32 {T0}, {sJ}, 3
        s_mul_i32 {T0}, {T0}, 3
        s_add_u32 s57, {T0}, {sC}''')
    if not cfg.ctl:
        a('s_endpgm')
    a.label('L_ctl1')
    a(f's_sleep 1\nds_read_b32 v2, v1 offset:{LANDED}')
    timeout()
    a(f'''s_waitcnt lgkmcnt(0)
        v_readfirstlane_b32 {T0}, v2
        s_cmp_lt_i32 {T0}, s54
        s_cbranch_scc1 L_ctl1
        s_and_b32 {T1}, s56, 7
        s_lshl_b32 {T2}, {T1}, 8
        s_mov_b32 s59, 1
        s_atomic_add s59, s[60:61], {T2} glc
        v_readlane_b32 {T1}, v10, {T1}
        s_add_u32 s56, s56, s57
        s_add_u32 s54, s54, {cfg.ctlstep}
        s_add_u32 {T1}, {T1}, s55
        s_add_u32 s55, s55, 32
        s_waitcnt lgkmcnt(0)
        s_sub_i32 s59, s59, {T1}
        s_cmp_lt_i32 s59, {cfg.ctllo}
        s_cselect_b32 {T0}, 1, 0
        s_cmp_ge_i32 s59, {cfg.ctlhi}
        s_cselect_b32 {T0}, 2, {T0}
        v_mov_b32 v2, {T0}
        ds_write_b32 v1, v2 offset:{MODE}
        s_cmp_lt_u32 s54, s58
        s_cbranch_scc1 L_ctl1''')
    a('s_endpgm')

    stamp_names.clear()
    vL4, vTr, vAct, vPub, vFl, vW4, vP = 'v1', 'v2', 'v3', 'v4', 'v5', 'v6', 'v7'
    t = [f'v{i}' for i in range(8, 16)]
    KF, S, KF2, WF, S0, OA = 16, 48, 80, 112, 128, 136
    QF = WF
    vFs, vU0, vU1, vSb0, vSb1, vTagP, vTagQ, vZ, vActW, vM, vL16, vK0 = [f'v{i}' for i in range(140, 152)]
    vGa, vXr, vGb = vU0, vU1, vSb0
    vGrp, vNq, vB2, vN, vBN = [f'v{i}' for i in range(152, 157)]
    sLd, sFF, sHi, sLoc, sLo16 = 's53', 's7', 's45', 's37', 's36'
    MK = [f's[{i}:{i + 1}]' for i in range(20, 34, 2)]
    v = lambda i, n=1: f'v{i}' if n == 1 else f'v[{i}:{i + n - 1}]'

    def rb(x):
        a(f'v_cvt_pk_bf16_f32 {x}, {x}, {x}\nv_lshlrev_b32 {x}, 16, {x}')

    lazy = [cfg.wsleep]

    def wait_landed(n):
        L, D = a.new('L_wl'), a.new('L_wd')
        a(f's_cmp_ge_i32 {sLd}, {n}\ns_cbranch_scc1 {D}')
        a.label(L)
        if lazy[0]:
            a(f's_sleep {lazy[0]}')
        a(f'ds_read_b32 {t[7]}, {vL4} offset:{LANDED}')
        timeout()
        a(f'''s_waitcnt lgkmcnt(0)
            v_readfirstlane_b32 {sLd}, {t[7]}
            s_cmp_lt_i32 {sLd}, {n}
            s_cbranch_scc1 {L}''')
        a.label(D)

    def set_freed(n):
        a(f'v_mov_b32 {t[7]}, {n}\nds_write_b32 {vW4}, {t[7]} offset:{FREED}')

    def read_local():
        a(f'ds_read_b32 {t[7]}, {vZ} offset:{LOCAL}\ns_waitcnt lgkmcnt(0)\nv_readfirstlane_b32 {sLoc}, {t[7]}')

    def csync(k, reads='', spec=None):
        spec = cfg.spec if spec is None else spec
        L = a.new('L_cs')
        a(f'v_mov_b32 {t[7]}, {k}\nds_write_b32 {vW4}, {t[7]} offset:{FLAG}')
        a.label(L)
        a(f'ds_read_b32 {t[7]}, {vFl} offset:{FLAG}')
        if spec:
            a(reads)
        timeout()
        a(f'''s_waitcnt lgkmcnt(0)
            v_cmp_gt_u32 vcc, {k}, {t[7]}
            s_cbranch_vccnz {L}''')
        if not spec and reads:
            a(reads)
            a('s_waitcnt lgkmcnt(0)')

    def act_reads(base, n, dst):
        return '\n'.join(f'ds_read_b128 {v(dst + 4 * j, 4)}, {vAct} offset:{base + 256 * j}' for j in range(n))

    def tr_reads(addr, blocks, dst):
        for i, off in enumerate(blocks):
            a(f'ds_read_b64_tr_b16 {v(dst + 4 * i, 2)}, {addr} offset:{off}')
            a(f'ds_read_b64_tr_b16 {v(dst + 4 * i + 2, 2)}, {addr} offset:{off + 4096}')

    def mfma(d, A, B, first):
        a(f'v_mfma_f32_16x16x32_bf16 {v(d, 4)}, {v(A, 4)}, {v(B, 4)}, {"0" if first else v(d, 4)}')

    def store_local(tx):
        if cfg.nocomm & 34:
            return
        G, D = a.new('L_sg'), a.new('L_sd')
        a(f's_cmp_eq_u32 {sLoc}, 0\ns_cbranch_scc1 {G}')
        a(tx)
        a.label(D)
        ool.append(f'{G}:\n{tx} sc1\ns_branch {D}')

    def publish4(d, soff, addr=vPub):
        a(f'v_bfi_b32 {v(d)}, {sFF}, {vTagP}, {v(d)}')
        a(f'v_bfi_b32 {v(d + 1)}, {sFF}, {vTagP}, {v(d + 1)}')
        store_local(f'buffer_store_dwordx4 {v(d, 4)}, {addr}, {WL}, {soff} offen')

    def publish16(x, addr, soff):
        a(f'v_cvt_pk_bf16_f32 {x}, {x}, {x}\nv_bfi_b32 {x}, {sLo16}, {vTagQ}, {x}')
        if not cfg.nocomm & 18:
            a(f'buffer_store_dword {x}, {addr}, {WS}, {soff} offen sc1')

    def next_gen():
        a(f'v_add_u32 {vTagP}, {TAGK}, {vTagP}\nv_add_u32 {vTagQ}, {TAGK}, {vTagQ}')

    def gather(loads, sleep=0, clean=True, light=None, after=None):
        L, D, R = a.new('L_g'), a.new('L_gd'), a.new('L_gr')
        if cfg.nocomm & 1:
            return
        for ld in loads:
            a(ld[0])
        if after:
            after()
        a.label(L)
        a('s_waitcnt vmcnt(0)')
        if not cfg.nocomm & 4:
            one = len(loads) == 1
            for i, (tx, r, two) in enumerate(loads):
                mk = 'vcc' if one else MK[i]
                if two:
                    a(f'v_bitop3_b32 {t[6 + (i & 1)]}, {v(r)}, {v(r + 1)}, {vTagQ} bitop3:0x7e')
                    a(f'v_cmp_ne_u32_sdwa {mk}, {t[6 + (i & 1)]}, {vZ} src0_sel:BYTE_0 src1_sel:DWORD')
                else:
                    a(f'v_cmp_ne_u32_sdwa {mk}, {v(r)}, {vTagQ} src0_sel:WORD_0 src1_sel:WORD_0')
            if one:
                a(f's_cbranch_vccnz {R}')
            else:
                a(f's_or_b64 vcc, {MK[0]}, {MK[1]}')
                for i in range(2, len(loads)):
                    a(f's_or_b64 vcc, vcc, {MK[i]}')
                a(f's_cbranch_scc1 {R}')
            o = [f'{R}:', f's_sub_u32 {sTO}, {sTO}, 1', 's_cbranch_scc1 L_end']
            if light is not None:
                H = a.new('L_gh')
                o += [f's_wqm_b64 vcc, {MK[0]}', 's_cmp_eq_u64 vcc, -1', f's_cbranch_scc0 {H}']
                if light:
                    o.append(f's_sleep {light}')
                o += [loads[0][0], f's_branch {L}', f'{H}:']
            if sleep:
                o.append(f's_sleep {sleep}')
            for i, ld in enumerate(loads):
                N = a.new('L_gn')
                o.append(f's_wqm_b64 exec, {"vcc" if one else MK[i]}')
                if not one:
                    o.append(f's_cbranch_execz {N}')
                o += [ld[0], f'{N}:']
            o += ['s_mov_b64 exec, -1', f's_branch {L}']
            ool.append('\n'.join(o))
        if clean:
            for tx, r, two in loads:
                if two:
                    a(f'v_and_b32 {v(r)}, {sHi}, {v(r)}\nv_and_b32 {v(r + 1)}, {sHi}, {v(r + 1)}')
                else:
                    a(f'v_and_b32 {v(r)}, 0xffff0000, {v(r)}')

    def preread(txs):
        if cfg.preread == 1:
            for tx in txs:
                a(tx + cfg.prent)
        if cfg.preread >= 2:
            for tx in txs:
                a(tx + 'nt')
            if cfg.preread == 3:
                a('s_waitcnt vmcnt(0)')
            for tx in txs:
                a(tx)

    def ld4(r, addr, soff, off=0, nt=False):
        return (f'buffer_load_dwordx4 {v(r, 4)}, {addr}, {WL}, {soff} offen offset:{off} sc1' + (' nt' if nt and not cfg.early else ''), r, True)

    def ld1(r, addr, soff, off=0):
        return (f'buffer_load_dword {v(r)}, {addr}, {WS}, {soff} offen offset:{off} sc1', r, False)

    def act_pos(dst, k, b):
        a(f'''v_lshrrev_b32 {dst}, 5, {k}
            v_lshlrev_b32 {dst}, 8, {dst}
            v_bfe_u32 {t[6]}, {k}, 2, 2
            v_lshl_add_u32 {dst}, {t[6]}, 6, {dst}
            v_lshl_add_u32 {dst}, {b}, 4, {dst}
            v_bfe_u32 {t[6]}, {k}, 4, 1
            v_lshl_add_u32 {dst}, {t[6]}, 3, {dst}
            v_and_b32 {t[6]}, 3, {k}
            v_lshl_add_u32 {dst}, {t[6]}, 1, {dst}''')

    def swap_reduce4(*rs):
        for r in rs:
            a(f'v_permlane32_swap_b32 {v(r)}, {v(r + 2)}\nv_permlane32_swap_b32 {v(r + 1)}, {v(r + 3)}')
        for r in rs:
            a(f'v_add_f32 {v(r)}, {v(r)}, {v(r + 2)}\nv_add_f32 {v(r + 1)}, {v(r + 1)}, {v(r + 3)}')
        for r in rs:
            a(f'v_permlane16_swap_b32 {v(r)}, {v(r + 1)}')
        for r in rs:
            a(f'v_add_f32 {v(r)}, {v(r)}, {v(r + 1)}')

    def dpp(op, x, ctl):
        a(f'{op}_dpp {x}, {x}, {x} {ctl} row_mask:0xf bank_mask:0xf')

    def tree(r, steps):
        for st in steps:
            for i in range(st):
                a(f'v_add_f32 {v(r + i)}, {v(r + i)}, {v(r + i + st)}')

    def gemv128(k, act, addr, soff, areg, pub, name, sleep=0, pos=vActW, pipe=0):
        if pipe and not cfg.nocomm:
            L, D = a.new('L_pp'), a.new('L_pd')
            P = areg + 16
            for i in range(3):
                a(ld1(P + i, addr, soff)[0])
                if i == 0:
                    a(f's_waitcnt vmcnt(0)\nv_cmp_ne_u32_sdwa vcc, {v(P)}, {vTagQ} src0_sel:WORD_0 src1_sel:WORD_0\nv_mov_b32 {v(areg)}, {v(P)}\ns_cbranch_vccz {D}')
                    a(ld1(P, addr, soff)[0])
                a(f's_sleep {pipe}')
            a.label(L)
            for i in range(4):
                a(ld1(P + (i + 3) % 4, addr, soff)[0])
                a(f'''s_waitcnt vmcnt(3)
                    v_cmp_ne_u32_sdwa vcc, {v(P + i)}, {vTagQ} src0_sel:WORD_0 src1_sel:WORD_0
                    v_mov_b32 {v(areg)}, {v(P + i)}
                    s_cbranch_vccz {D}
                    s_sleep {pipe}''')
            timeout()
            a(f's_branch {L}')
            a.label(D)
        else:
            gather([ld1(areg, addr, soff)], clean=False, sleep=sleep)
        stamp(name)
        a(f'ds_write_b16_d16_hi {pos}, {v(areg)} offset:{act}')
        csync(k, act_reads(act, 4, areg))
        for j in range(4):
            mfma(OA, WF + 4 * j, areg + 4 * j, j == 0)
        publish4(OA, pub)

    def warm(r):
        if not cfg.warm:
            return
        a('s_mov_b64 exec, 0')
        for w in range(7):
            a(f's_cmp_eq_u32 {sW}, {w}\ns_cbranch_scc1 {r}_e{w}')
        a(f's_branch {r}_e7')
        a.label(f'{r}_ret')
        a('s_mov_b64 exec, -1')

    a.label('L_consumer')
    if DBG:
        for i in range(32):
            a(f's_mov_b32 s{64 + i}, 0')
    a(f'''s_sub_u32 {sW}, {sW}, 1
        v_lshlrev_b32 {vL4}, 2, v0
        s_lshr_b32 {T0}, {sW}, 1
        s_lshl_b32 {T0}, {T0}, 11
        s_and_b32 {T1}, {sW}, 1
        s_lshl_b32 {T1}, {T1}, 8
        s_add_u32 {T0}, {T0}, {T1}
        s_and_b32 {T1}, {sJ}, 3
        s_lshl_b32 {T1}, {T1}, 9
        s_add_u32 {T0}, {T0}, {T1}
        v_add_u32 {t[4]}, {T0}, {vL4}
        global_load_dword {v(KF + 4)}, {t[4]}, {sp(pC)}
        s_mov_b32 {sLd}, 0
        s_movk_i32 {sFF}, 0xff
        s_movk_i32 {sHi}, 0xff00
        s_mov_b32 {sLo16}, 0xffff
        v_mov_b32 {vZ}, 0
        v_and_b32 {vFl}, 28, {vL4}
        s_lshl_b32 {T0}, {sW}, 2
        v_mov_b32 {vW4}, {T0}
        v_lshlrev_b32 {vL16}, 4, v0
        v_lshrrev_b32 {vGrp}, 4, v0
        v_and_b32 {vNq}, 3, v0
        v_bfe_u32 {vB2}, v0, 2, 2
        v_lshl_add_u32 {vN}, {vNq}, 2, {vGrp}
        v_lshlrev_b32 {vBN}, 6, {vB2}
        v_lshl_add_u32 {vBN}, {vN}, 2, {vBN}
        s_cmp_lg_u32 {sJ}, 24
        s_cbranch_scc1 L_nox''')
    a(f'''s_lshl_b32 {T0}, {sW}, 10
        v_add_u32 {t[2]}, {T0}, {vL16}
        s_lshl3_add_u32 {T0}, {sC}, {sW}
        s_lshl_b32 {T0}, {T0}, 5
        v_lshlrev_b32 {t[3]}, 11, {vB2}
        v_lshl_add_u32 {t[3]}, {vN}, 1, {t[3]}
        v_add_u32 {t[3]}, {T0}, {t[3]}
        global_load_dwordx4 {v(KF, 4)}, {t[2]}, {sp(pX)}
        global_load_ushort {v(S0 + 4)}, {t[3]}, {sp(pX)}''')
    a.label('L_nox')
    a(f'''v_lshrrev_b32 {t[0]}, 2, v0
        v_and_b32 {t[1]}, 7, {t[0]}
        v_lshlrev_b32 {t[1]}, 1, {t[1]}
        v_bfe_u32 {t[2]}, v0, 1, 1
        s_lshl_b32 {T0}, {sW}, 1
        v_or_b32 {t[2]}, {T0}, {t[2]}
        v_xor_b32 {t[2]}, {t[2]}, {t[1]}
        v_lshlrev_b32 {vTr}, 8, {t[0]}
        v_lshl_add_u32 {vTr}, {t[2]}, 4, {vTr}
        v_and_b32 {t[2]}, 1, v0
        v_lshl_add_u32 {vTr}, {t[2]}, 3, {vTr}''')
    a(f'''v_lshlrev_b32 {vAct}, 6, {vGrp}
        v_lshl_add_u32 {vAct}, {vNq}, 4, {vAct}
        v_lshlrev_b32 {vPub}, 4, {vGrp}
        v_lshl_add_u32 {vPub}, {vNq}, 6, {vPub}
        v_lshl_or_b32 {vPub}, {vB2}, 29, {vPub}
        v_and_b32 {t[2]}, 7, v0
        v_lshlrev_b32 {vP}, 7, {vGrp}
        v_lshl_add_u32 {vP}, {t[2]}, 4, {vP}
        v_lshlrev_b32 {t[2]}, 1, {t[2]}
        v_xor_b32 {t[2]}, {t[2]}, {vGrp}
        v_and_b32 {t[1]}, 15, v0
        v_lshlrev_b32 {vK0}, 8, {t[1]}
        v_lshl_add_u32 {vK0}, {t[2]}, 4, {vK0}
        s_lshl_b32 {T0}, {sW}, 4
        v_add_u32 {t[2]}, {T0}, {vN}''')
    act_pos(vActW, t[2], vB2)
    if DBG:
        stamp('entry')
        a('s_mov_b32 s64, s96')
    stamp('start')
    if cfg.nocons:
        a('s_barrier')
        set_freed(1000)
        a('s_branch L_fin')
    a(f'''s_barrier
        s_waitcnt lgkmcnt(0)
        s_add_u32 {sTag}, {sTag}, {TAGK}
        v_mov_b32 {t[0]}, {TAGC}
        v_mad_u32_u24 {vTagP}, {vGrp}, {t[0]}, {sTag}
        v_mad_u32_u24 {vTagQ}, {vNq}, {t[0]}, {sTag}
        s_cmp_ge_u32 s2, 192
        s_cbranch_scc1 L_noA''')
    a(f'''s_and_b32 {T0}, {sW}, 1
        s_lshl_b32 {T0}, {T0}, 7
        v_lshl_add_u32 {t[0]}, v0, 1, {T0}
        s_lshr_b32 {T0}, {sW}, 1
        v_mov_b32 {t[1]}, {T0}''')
    act_pos(t[2], t[0], t[1])
    a(f'''s_waitcnt vmcnt(0)
        v_lshlrev_b32 {t[0]}, 16, {v(KF + 4)}
        v_and_b32 {t[1]}, 0xffff0000, {v(KF + 4)}
        v_mul_f32 {t[3]}, {f32(-LOG2E)}, {t[0]}
        v_mul_f32 {t[4]}, {f32(-LOG2E)}, {t[1]}
        v_exp_f32 {t[3]}, {t[3]}
        v_exp_f32 {t[4]}, {t[4]}
        v_add_f32 {t[3]}, 1.0, {t[3]}
        v_add_f32 {t[4]}, 1.0, {t[4]}
        v_rcp_f32 {t[3]}, {t[3]}
        v_rcp_f32 {t[4]}, {t[4]}
        v_mul_f32 {t[0]}, {t[0]}, {t[3]}
        v_mul_f32 {t[1]}, {t[1]}, {t[4]}
        v_cvt_pk_bf16_f32 {t[0]}, {t[0]}, {t[1]}
        ds_write_b32 {t[2]}, {t[0]} offset:{ACT_A}''')
    csync(1, act_reads(ACT_A, 8, S))
    a(f'''v_add_u32 {t[0]}, {slot(N_A)}, {vTr}
        s_lshr_b32 {T1}, {sJ}, 2
        s_lshl3_add_u32 {T1}, {T1}, {sW}
        s_and_b32 {T2}, {sJ}, 3
        s_lshl2_add_u32 {T1}, {T1}, {T2}
        s_lshl_b32 {T1}, {T1}, 8
        s_add_u32 {T1}, {T1}, {LM}''')
    for hf in range(2):
        wait_landed(N_A + 4 * hf + 4)
        tr_reads(t[0], [8192 * (4 * hf + j) for j in range(4)], KF + 16 * hf)
        if hf:
            read_local()
        else:
            a('s_waitcnt lgkmcnt(0)')
        set_freed(N_A + 4 * hf + 4)
        for j in range(4 * hf, 4 * hf + 4):
            mfma(OA, KF + 4 * j, S + 4 * j, j == 0)
    publish4(OA, T1)
    stamp('A_pub')
    a.label('L_noA')
    a(f'v_add_u32 {t[0]}, {slot(N_Q)}, {vTr}')
    wait_landed(N_K)
    tr_reads(t[0], [8192 * j for j in range(4)], WF)
    a(f's_add_u32 s54, {sW}, {N_K}\ns_waitcnt lgkmcnt(0)')
    set_freed('s54')
    a(f'''s_lshl_b32 {T1}, {sW}, 10
        s_lshl3_add_u32 {T3}, {sC}, {sW}
        s_cmp_eq_u32 {sJ}, 25
        s_cbranch_scc1 L_us
        s_cmp_lg_u32 {sJ}, 24
        s_cbranch_scc1 L_nored''')
    sm, sq = t[0], t[1]
    a('s_waitcnt vmcnt(0)')
    for i in range(4):
        a(f'v_lshlrev_b32 {t[4]}, 16, {v(KF + i)}\nv_and_b32 {t[5]}, 0xffff0000, {v(KF + i)}')
        if i == 0:
            a(f'v_add_f32 {sm}, {t[4]}, {t[5]}\nv_mul_f32 {sq}, {t[4]}, {t[4]}')
        else:
            a(f'v_add_f32 {sm}, {sm}, {t[4]}\nv_fmac_f32 {sq}, {t[4]}, {t[4]}\nv_add_f32 {sm}, {sm}, {t[5]}')
        a(f'v_fmac_f32 {sq}, {t[5]}, {t[5]}')
    a(f'''v_permlane32_swap_b32 {t[0]}, {t[1]}
        v_add_f32 {t[0]}, {t[0]}, {t[1]}
        v_mov_b32 {t[1]}, {t[0]}
        v_permlane16_swap_b32 {t[0]}, {t[1]}
        v_add_f32 {t[0]}, {t[0]}, {t[1]}''')
    for r in (8, 4, 2, 1):
        dpp('v_add_f32', t[0], f'row_ror:{r}')
    a(f'''v_lshrrev_b32 {t[1]}, 5, v0
        v_lshlrev_b32 {t[1]}, 2, {t[1]}
        v_lshl_add_u32 {t[1]}, {vW4}, 1, {t[1]}
        ds_write_b32 {t[1]}, {t[0]} offset:{ST1}
        v_lshlrev_b32 {t[0]}, 4, {vB2}''')
    csync(1, f'ds_read_b128 {v(S0, 4)}, {t[0]} offset:{ST1}')
    vNrm = v(S0 + 4)
    a(f'''v_add_f32 {sm}, {v(S0)}, {v(S0 + 2)}
        v_add_f32 {sq}, {v(S0 + 1)}, {v(S0 + 3)}
        v_mul_f32 {sm}, {f32(1 / 1024)}, {sm}
        v_mul_f32 {sq}, {f32(1 / 1024)}, {sq}
        v_fma_f32 {sq}, -{sm}, {sm}, {sq}
        v_max_f32 {sq}, 0, {sq}''')
    rb(sq)
    rb(sm)
    a(f'v_add_f32 {sq}, {f32(1e-5)}, {sq}')
    rb(sq)
    a(f'v_sqrt_f32 {sq}, {sq}')
    rb(sq)
    a(f'v_rcp_f32 {sq}, {sq}')
    a(f'v_lshlrev_b32 {vNrm}, 16, {vNrm}\nv_sub_f32 {vNrm}, {vNrm}, {sm}')
    rb(vNrm)
    a(f'v_mul_f32 {vNrm}, {vNrm}, {sq}')
    rb(vNrm)
    a(f'''s_add_u32 {T1}, {T1}, {LM}
        s_add_u32 {T2}, {T1}, 8192
        s_lshl_b32 {T3}, {T3}, 8
        s_add_u32 {T3}, {T3}, {HH}''')
    gather([ld4(KF, vL16, T1, nt=True), ld4(KF + 4, vL16, T2, nt=True)], sleep=cfg.lsleep)
    swap_reduce4(KF, KF + 4)
    rb(v(KF))
    rb(v(KF + 4))
    a(f'v_add_f32 {v(KF + 4)}, 1.0, {v(KF + 4)}')
    rb(v(KF + 4))
    a(f'v_mul_f32 {v(KF + 4)}, {vNrm}, {v(KF + 4)}')
    rb(v(KF + 4))
    a(f'v_add_f32 {v(KF)}, {v(KF)}, {v(KF + 4)}')
    publish16(v(KF), vBN, T3)
    stamp('H_pub')
    a('s_branch L_nored')
    a.label('L_us')
    a(f'''s_add_u32 {T1}, {T1}, {LM + 3 * 8192}
        s_add_u32 {T2}, {T1}, 8192
        s_lshl_b32 {T3}, {T3}, 9
        s_add_u32 {T3}, {T3}, {US}
        v_lshlrev_b32 {t[0]}, 3, v0''')
    gather([ld4(KF, vL16, T1, nt=True), ld4(KF + 4, vL16, T2, nt=True)], sleep=cfg.fsleep)
    swap_reduce4(KF, KF + 4)
    rb(v(KF + 4))
    a(f'''v_add_f32 {v(KF + 1)}, 1.0, {v(KF + 4)}
        v_cvt_pk_bf16_f32 {v(KF)}, {v(KF)}, {v(KF)}
        v_cvt_pk_bf16_f32 {v(KF + 1)}, {v(KF + 1)}, {v(KF + 1)}
        v_bfi_b32 {v(KF)}, {sLo16}, {vTagQ}, {v(KF)}''')
    if not cfg.nocomm & 18:
        a(f'buffer_store_dwordx2 {v(KF, 2)}, {t[0]}, {WS}, {T3} offen sc1')
    a.label('L_nored')

    def pace(n, lead):
        a(f's_cmp_lt_u32 s2, 192\ns_cselect_b32 {T0}, {n}, {n + lead}')
        wait_landed(T0)

    def k_pull(i, dst):
        a(f's_add_u32 {T0}, s54, 1')
        wait_landed(T0)
        a(f'''s_and_b32 {T0}, s54, 15
            s_lshl_b32 {T0}, {T0}, 13
            s_add_u32 {T0}, {T0}, {RING0}
            v_add_u32 {t[0]}, {T0}, {vK0}
            v_xor_b32 {t[1]}, 64, {t[0]}
            v_xor_b32 {t[2]}, 0x80, {t[0]}
            v_xor_b32 {t[3]}, 0xc0, {t[0]}''')
        for tt in range(2):
            for j in range(4):
                a(f'ds_read_b128 {v(dst + 16 * tt + 4 * j, 4)}, {t[j]} offset:{4096 * tt}')
        if i < 3:
            a(f's_add_u32 s54, s54, 8')
        else:
            a(f's_mov_b32 s54, {N_O}')
        a('s_waitcnt lgkmcnt(0)')
        set_freed('s54')

    KSRC = [KF, S, KF2, S]
    k_pull(0, KF)
    pace(N_K + cfg.e1at, cfg.e1lead)
    read_local()
    stamp('e1_go')
    a(f'''s_and_b32 {T0}, {sJ}, 7
        s_lshl3_add_u32 {T1}, {T0}, {sW}
        s_lshl_b32 {T1}, {T1}, 8
        s_add_u32 {T1}, {T1}, {HH}
        s_and_b32 {T2}, {sJ}, 24
        s_add_u32 {T2}, {T2}, {sW}
        s_lshl3_add_u32 {T2}, {T2}, {T0}
        s_lshl_b32 {T2}, {T2}, 8''')
    assert LQ == 0
    gemv128(2, ACT_B, vBN, T1, KF2, T2, 'e1', sleep=cfg.fsleep)
    stamp('B_pub')
    k_pull(1, S)
    a(f'''s_cmp_lg_u32 {sW}, 0
        s_cbranch_scc1 L_noq
        s_lshl_b32 {T1}, {sJ}, 11
        s_lshl_b32 {T2}, {sC}, 5
        s_add_u32 {T2}, {T2}, {sJ}
        s_lshl_b32 {T2}, {T2}, 6
        s_add_u32 {T2}, {T2}, {QQ}
        v_lshlrev_b32 {t[0]}, 14, {vB2}
        v_lshl_add_u32 {t[0]}, {vN}, 2, {t[0]}''')
    gather([ld4(KF2, vL16, T1, nt=True), ld4(KF2 + 4, vL16, T1, 1024, nt=True)], sleep=cfg.lsleep)
    tree(KF2, (4,))
    swap_reduce4(KF2)
    publish16(v(KF2), t[0], T2)
    stamp('Q_pub')
    a.label('L_noq')
    k_pull(2, KF2)
    pace(N_K + cfg.e2at, cfg.e2lead)
    stamp('e2_go')
    sPh, sB, sG, sS = 's55', 's56', 's57', 's44'
    a(f'''s_lshr_b32 {sPh}, {sJ}, 4
        s_lshl1_add_u32 {T0}, {sC}, {sPh}
        s_and_b32 {sB}, {T0}, 3
        s_lshr_b32 {sG}, {T0}, 2
        s_and_b32 {sS}, {sJ}, 15''')
    a(f'''s_lshl3_add_u32 {T0}, {sG}, {sW}
        s_lshl_b32 {T0}, {T0}, 9
        s_lshl_b32 {T1}, {sB}, 14
        s_add_u32 {T0}, {T0}, {T1}
        s_add_u32 {T0}, {T0}, {QQ}
        s_mul_i32 {T1}, {sW}, 272
        v_lshrrev_b32 {t[0]}, 1, {vBN}
        v_add_u32 {t[0]}, {T1}, {t[0]}
        v_mul_u32_u24 {t[1]}, 68, {vFl}
        v_lshl_add_u32 {t[1]}, {vGrp}, 4, {t[1]}''')
    gather([ld1(S0, vBN, T0), ld1(S0 + 1, vBN, T0, 256)], sleep=cfg.fsleep, clean=False)
    stamp('e2')
    a(f'''ds_write_b16_d16_hi {t[0]}, {v(S0)} offset:{QB}
        ds_write_b16_d16_hi {t[0]}, {v(S0 + 1)} offset:{QB + 128}''')
    csync(3, '\n'.join(f'ds_read_b128 {v(QF + 4 * j, 4)}, {t[1]} offset:{QB + 64 * j}' for j in range(4)))
    stamp('q_ready')
    SC = [S0, KF, KF + 8, KF + 16]
    for i in range(4):
        src = KSRC[i]
        if i == 3:
            k_pull(i, src)
        for j in range(4):
            for tt in range(2):
                mfma(SC[i] + 4 * tt, src + 16 * tt + 4 * j, QF + 4 * j, j == 0)
        for r in range(0, 8, 2):
            x, y = v(SC[i] + r), v(SC[i] + r + 1)
            a(f'''v_cvt_pk_bf16_f32 {y}, {x}, {y}
                v_lshlrev_b32 {x}, 16, {y}
                v_and_b32 {y}, 0xffff0000, {y}
                v_mul_f32 {x}, {f32(128 ** -0.5)}, {x}
                v_mul_f32 {y}, {f32(128 ** -0.5)}, {y}
                v_cvt_pk_bf16_f32 {y}, {x}, {y}
                v_lshlrev_b32 {x}, 16, {y}
                v_and_b32 {y}, 0xffff0000, {y}''')
            if i == 0 and r == 0:
                a(f'v_max_f32 {vM}, {x}, {y}')
            else:
                a(f'v_max3_f32 {vM}, {vM}, {x}, {y}')
    a(f'''v_mov_b32 {t[0]}, {vM}
        v_permlane32_swap_b32 {vM}, {t[0]}
        v_max_f32 {vM}, {vM}, {t[0]}
        v_mov_b32 {t[0]}, {vM}
        v_permlane16_swap_b32 {vM}, {t[0]}
        v_max_f32 {vM}, {vM}, {t[0]}
        v_lshlrev_b32 {t[1]}, 3, {vFl}
        v_add_u32 {t[2]}, {t[1]}, {vW4}
        ds_write_b32 {t[2]}, {vM} offset:{MX}''')
    csync(4, f'ds_read_b128 {v(KF2, 4)}, {t[1]} offset:{MX}\nds_read_b128 {v(KF2 + 4, 4)}, {t[1]} offset:{MX + 16}')
    a(f'''v_max3_f32 {vM}, {v(KF2)}, {v(KF2 + 1)}, {v(KF2 + 2)}
        v_max3_f32 {vM}, {vM}, {v(KF2 + 3)}, {v(KF2 + 4)}
        v_max3_f32 {vM}, {vM}, {v(KF2 + 5)}, {v(KF2 + 6)}
        v_max_f32 {vM}, {vM}, {v(KF2 + 7)}
        s_lshl_b32 {T0}, {sW}, 9
        v_add_u32 {t[3]}, {T0}, {vP}''')
    for i in range(4):
        for r in range(8):
            x = v(SC[i] + r)
            a(f'v_sub_f32 {x}, {x}, {vM}\nv_mul_f32 {x}, {f32(LOG2E)}, {x}\nv_exp_f32 {x}, {x}')
        for r in range(8):
            x = v(SC[i] + r)
            if i == 0 and r == 0:
                continue
            if i == 0 and r == 1:
                a(f'v_add_f32 {t[0]}, {v(SC[0])}, {x}')
            else:
                a(f'v_add_f32 {t[0]}, {t[0]}, {x}')
        for r in range(4):
            a(f'v_cvt_pk_bf16_f32 {v(KF2 + 4 * i + r)}, {v(SC[i] + 2 * r)}, {v(SC[i] + 2 * r + 1)}')
        a(f'ds_write_b128 {t[3]}, {v(KF2 + 4 * i, 4)} offset:{PB + 4096 * i}')
    a(f'''v_mov_b32 {t[4]}, {t[0]}
        v_permlane32_swap_b32 {t[0]}, {t[4]}
        v_add_f32 {t[0]}, {t[0]}, {t[4]}
        v_mov_b32 {t[4]}, {t[0]}
        v_permlane16_swap_b32 {t[0]}, {t[4]}
        v_add_f32 {t[0]}, {t[0]}, {t[4]}
        ds_write_b32 {t[2]}, {t[0]} offset:{LS}''')
    csync(5, f'ds_read_b128 {v(KF2, 4)}, {t[1]} offset:{LS}\nds_read_b128 {v(KF2 + 4, 4)}, {t[1]} offset:{LS + 16}')
    a(f's_cmp_lg_u32 {sW}, 0\ns_cbranch_scc1 L_noml')
    tree(KF2, (4, 2, 1))
    a(f'''v_bfi_b32 {v(KF2)}, {sFF}, {vTagQ}, {v(KF2)}
        v_bfi_b32 {v(KF2 + 1)}, {sFF}, {vTagQ}, {vM}
        s_lshl_b32 {T0}, {sJ}, 6
        s_add_u32 {T0}, {T0}, {LL}
        v_lshlrev_b32 {t[0]}, 3, v0
        s_mov_b64 exec, 0xff''')
    store_local(f'buffer_store_dwordx2 {v(KF2, 2)}, {t[0]}, {WL}, {T0} offen')
    a('s_mov_b64 exec, -1')
    a.label('L_noml')
    stamp('p_ready')

    def wo_frags(n):
        a(f'v_add_u32 {t[0]}, {slot(N_O)}, {vTr}')
        wait_landed(n)
        tr_reads(t[0], [8192 * j for j in range(4)], WF)
    if cfg.olate:
        a('s_cmp_lt_u32 s2, 224\ns_cbranch_scc1 L_nowo')
    wo_frags(N_V)
    a(f's_mov_b32 s54, {N_V}')
    a.label('L_nowo')
    sVe = 's58'
    a(f'''s_add_u32 {sVe}, s54, {cfg.preat}
        v_mov_b32 {v(OA)}, 0
        v_mov_b32 {v(OA + 1)}, 0
        v_mov_b32 {v(OA + 2)}, 0
        v_mov_b32 {v(OA + 3)}, 0''')

    def v_loop(end):
        L = a.new('L_v')
        a.label(L)
        a(f'''s_and_b32 {T1}, s54, 15
            s_lshl_b32 {T1}, {T1}, 13
            s_add_u32 {T1}, {T1}, {RING0}
            v_add_u32 {t[0]}, {T1}, {vTr}
            s_add_u32 s54, s54, 1
            ds_read_b128 {v(KF + 4, 4)}, {vP} offset:{PB}''')
        wait_landed('s54')
        tr_reads(t[0], [0], KF)
        a(f'''v_add_u32 {vP}, 512, {vP}
            v_mov_b32 {t[7]}, s54
            s_cmp_lt_u32 s54, {end}
            s_waitcnt lgkmcnt(0)''')
        mfma(OA, KF, KF + 4, False)
        a(f'ds_write_b32 {vW4}, {t[7]} offset:{FREED}\ns_cbranch_scc1 {L}')

    v_loop(sVe)
    stamp('v_half')
    (vOpA, vSeg, vSeg2, vN4, vOA_, vXS, vXA, vGA_, vEP0, vStW, vStR, vGA0, vGA1, vFA, vGS, vFTr, vOut, vMk, vActD, vHint, vCA, vCB, vCC, vOne, vHint2) = [v(KF2 + i) for i in range(25)]
    sJJ, sKsE = sJ, 's59'
    sLoP, sLoG, sOoP, sOoG, sLdP, sRg, sXp = 's60', 's61', 's16', 's17', 's18', 's19', 's34'
    sXg0, sXg1, sLeP, sLeG, sGp, sGg, sLfP = 's35', 's40', 's41', 's98', 's99', 's100', 's101'
    a(f'''s_and_b32 {sKsE}, {sJJ}, 3
        s_lshl_b32 {T0}, {sPh}, 10
        s_add_u32 {T0}, {T0}, {LL}
        v_lshlrev_b32 {t[0]}, 3, v0
        v_lshrrev_b32 {t[1]}, 2, v0
        v_lshlrev_b32 {vSeg}, 8, {t[1]}
        v_lshl_add_u32 {vSeg}, {vNq}, 4, {vSeg}''')
    common = [(f'buffer_load_dwordx2 {v(KF + 8, 2)}, {t[0]}, {WL}, {T0} offen sc1' + NT, KF + 8, True),
              (f'buffer_load_dwordx2 {v(KF + 10, 2)}, {t[0]}, {WL}, {T0} offen offset:512 sc1' + NT, KF + 10, True)]
    a('s_cmp_ge_u32 s2, 224\ns_cbranch_scc1 L_preR')
    a(f'''s_lshl3_add_u32 {T2}, {sKsE}, {sW}
        s_lshl_b32 {T2}, {T2}, 10
        s_add_u32 {T2}, {T2}, {US}''')
    gather(common + [(f'buffer_load_dwordx2 {v(S + 2 * i, 2)}, {t[0]}, {WS}, {T2} offen offset:{512 * i} sc1', S + 2 * i, False) for i in range(2)],
           sleep=cfg.fsleep)
    a(f'''v_mov_b32 {vSb0}, {v(S)}
        v_mov_b32 {vSb1}, {v(S + 2)}
        v_and_b32 {vU0}, 0xffff0000, {v(S + 1)}
        v_and_b32 {vU1}, 0xffff0000, {v(S + 3)}
        s_branch L_preF''')
    a.label('L_preR')
    a(f'''s_lshr_b32 {T1}, {sW}, 2
        s_lshl1_add_u32 {T1}, {sKsE}, {T1}
        s_and_b32 {T2}, {sW}, 3
        s_lshl3_add_u32 {T3}, {sC}, {T1}
        s_lshl2_add_u32 {sXp}, {T3}, {T2}
        s_lshl_b32 {sXp}, {sXp}, {lg(PX_)}
        s_add_u32 {sXp}, {sXp}, {X1}
        s_lshl_b32 {T3}, {T3}, 5
        s_lshl_b32 {sRg}, {T2}, 11
        s_add_u32 {T3}, {T3}, {sRg}
        v_lshl_add_u32 {vOut}, {vN}, 1, {T3}
        global_load_ushort {vXr}, {vOut}, {sp(pX)}
        s_lshl_b32 {T2}, {T2}, 6
        s_lshl_b32 {sRg}, {T1}, 13
        s_add_u32 {sRg}, {sRg}, {T2}
        s_add_u32 {sRg}, {sRg}, {LD}
        s_lshl_b32 {T1}, {T1}, 10
        s_add_u32 {T1}, {T1}, {T2}
        s_add_u32 {T2}, {T1}, {LM + 2 * 8192}
        s_add_u32 {T3}, {T1}, {LM + 5 * 8192}
        v_lshlrev_b32 {t[1]}, 8, {vGrp}
        v_lshl_add_u32 {t[1]}, {vNq}, 4, {t[1]}''')
    gather(common + [ld4(S, t[1], T2, nt=True), ld4(S + 4, t[1], T3, nt=True)], sleep=cfg.fsleep)
    swap_reduce4(S, S + 4)
    a(f'''v_cvt_pk_bf16_f32 {vGb}, {v(S)}, {v(S + 4)}
        v_lshlrev_b32 {vGa}, 16, {vGb}
        v_and_b32 {vGb}, 0xffff0000, {vGb}
        v_lshlrev_b32 {vXr}, 16, {vXr}
        v_add_u32 {vSeg2}, 4096, {vSeg}
        v_cmp_gt_u32 vcc, 48, v0
        v_cndmask_b32 {vMk}, 0, 1.0, vcc
        v_cndmask_b32 {vXA}, {vSeg}, {vSeg2}, vcc''')
    a.label('L_preF')

    def red_hi(op, x):
        dpp(op, x, 'row_ror:8')
        a(f'''v_mov_b32 {t[4]}, {x}
            v_permlane16_swap_b32 {x}, {t[4]}
            {op} {x}, {x}, {t[4]}
            v_mov_b32 {t[4]}, {x}
            v_permlane32_swap_b32 {x}, {t[4]}
            {op} {x}, {x}, {t[4]}''')
    a(f'v_max_f32 {t[1]}, {v(KF + 9)}, {v(KF + 11)}')
    red_hi('v_max_f32', t[1])
    a(f'''v_sub_f32 {v(KF + 9)}, {v(KF + 9)}, {t[1]}
        v_sub_f32 {v(KF + 11)}, {v(KF + 11)}, {t[1]}
        v_sub_f32 {vM}, {vM}, {t[1]}
        v_mul_f32 {v(KF + 9)}, {f32(LOG2E)}, {v(KF + 9)}
        v_mul_f32 {v(KF + 11)}, {f32(LOG2E)}, {v(KF + 11)}
        v_mul_f32 {vM}, {f32(LOG2E)}, {vM}
        v_exp_f32 {v(KF + 9)}, {v(KF + 9)}
        v_exp_f32 {v(KF + 11)}, {v(KF + 11)}
        v_exp_f32 {vM}, {vM}
        v_mul_f32 {t[1]}, {v(KF + 8)}, {v(KF + 9)}
        v_fmac_f32 {t[1]}, {v(KF + 10)}, {v(KF + 11)}''')
    red_hi('v_add_f32', t[1])
    a(f'v_rcp_f32 {t[1]}, {t[1]}\nv_mul_f32 {vFs}, {vM}, {t[1]}')
    next_gen()
    read_local()
    assert LO == 0
    a(f'''s_lshl3_add_u32 {T0}, {sPh}, {sW}
        s_lshl_b32 {T0}, {T0}, 5
        s_add_u32 {T0}, {T0}, {sS}
        s_lshl_b32 {sLoP}, {T0}, 8
        v_and_b32 {vOpA}, 0xff, {vPub}
        v_and_b32 {t[0]}, 1, {vB2}
        v_lshl_or_b32 {vOpA}, {t[0]}, 12, {vOpA}
        v_and_b32 {t[0]}, 8, v0
        v_lshl_or_b32 {vOpA}, {t[0]}, 27, {vOpA}
        v_lshlrev_b32 {vN4}, 2, {vN}
        v_lshl_or_b32 {vXS}, {vB2}, 29, {vN4}''')
    a(f'''s_lshl3_add_u32 {T0}, {sKsE}, {sW}
        s_lshl_b32 {sLoG}, {T0}, 12
        s_bfe_u32 {T1}, {T0}, 0x30001
        s_lshl3_add_u32 {T1}, {sG}, {T1}
        s_lshr_b32 {T2}, {sKsE}, 1
        s_and_b32 {T3}, {sB}, 2
        s_add_u32 {T2}, {T2}, {T3}
        s_lshl2_add_u32 {T1}, {T1}, {T2}
        s_and_b32 {T2}, {sW}, 1
        s_lshl1_add_u32 {T1}, {T1}, {T2}
        s_lshl_b32 {T1}, {T1}, {lg(PO_) + 2}
        s_add_u32 {sOoP}, {T1}, {OO}''')
    a(f'''s_lshl3_add_u32 {T0}, {sJ}, {sW}
        s_lshl_b32 {T0}, {T0}, {lg(PO_) + 2}
        s_add_u32 {sOoG}, {T0}, {OO}
        v_lshl_add_u32 {vOA_}, {vB2}, {lg(PO_)}, {vN4}
        s_lshl_b32 {T2}, {T2}, 6
        v_lshl_add_u32 {t[1]}, {vB2}, 4, {vN}
        v_add_u32 {t[1]}, {T2}, {t[1]}
        s_lshr_b32 {T2}, {sW}, 1
        v_mov_b32 {t[2]}, {T2}
        s_lshl_b32 {T0}, {sW}, 5
        s_add_u32 {T1}, {T0}, {sJ}
        s_lshl_b32 {T1}, {T1}, 8
        s_add_u32 {sLdP}, {T1}, {LD}''')
    act_pos(vActD, t[1], t[2])
    if cfg.preread:
        a(f'''s_cmp_lg_u32 {sW}, 6
            s_cbranch_scc1 L_nopre
            s_mul_i32 {T0}, {sJ}, 6144
            v_lshlrev_b32 {t[5]}, 7, v0
            s_mov_b32 exec_hi, 0xffff''')
        preread([f'buffer_load_dword {v(S + 8)}, {t[5]}, {WL}, {T0} offen sc1 '])
        a('s_mov_b64 exec, -1')
        a.label('L_nopre')
    if cfg.l2code & 1:
        a(f'''s_cmp_lg_u32 {sW}, 7
            s_cbranch_scc1 L_nocode
            s_getpc_b64 s[20:21]''')
        a.label('L_pc')
        a(f'''s_mov_b32 s22, L_last-L_pc
            s_mov_b32 s23, 0x20000
            v_lshlrev_b32 {t[5]}, 7, v0
            buffer_load_dword {v(S + 12)}, {t[5]}, s[20:23], 0 offen''')
        a.label('L_nocode')
    if cfg.pretouch & 8:
        a(f'buffer_load_dword {v(S + 12)}, {vOA_}, {WS}, {sOoG} offen sc1 nt')
    if cfg.pretouch & 1:
        a(f'buffer_load_dword {v(S + 12)}, {vOA_}, {WS}, {sOoG} offen sc1')
    a('s_cmp_ge_u32 s2, 224\ns_cbranch_scc1 L_predone')
    a(f'''s_lshl_b32 {T0}, {sW}, {lg(PX_) + 5}
        s_add_u32 {sXg0}, {T0}, {X1}
        s_lshl3_add_u32 {T0}, {sKsE}, {sW}
        s_lshl_b32 {T0}, {T0}, {lg(PX_) + 3}
        s_add_u32 {sXg1}, {T0}, {X1}
        v_lshrrev_b32 {t[1]}, 2, v0
        v_lshlrev_b32 {vSeg2}, {lg(PX_)}, {t[1]}
        v_lshl_add_u32 {vSeg2}, {vNq}, 4, {vSeg2}
        v_lshl_add_u32 {vXA}, {vB2}, {lg(PX_)}, {vN4}
        s_lshl_b32 {T0}, {sW}, 10
        v_lshlrev_b32 {vEP0}, 8, {vNq}
        v_lshl_add_u32 {vEP0}, {vB2}, 4, {vEP0}
        v_lshl_add_u32 {vEP0}, {vGrp}, 1, {vEP0}
        v_add_u32 {vEP0}, {T0}, {vEP0}
        ds_write_b16_d16_hi {vEP0}, {vU0} offset:{ACT_E + 128}
        ds_write_b16_d16_hi {vEP0}, {vU1} offset:{ACT_E + 128 + 8}
        ds_write_b16_d16_hi {vEP0}, {vSb0} offset:{ACT_E + 192}
        ds_write_b16_d16_hi {vEP0}, {vSb1} offset:{ACT_E + 192 + 8}
        v_cmp_gt_u32 vcc, 2, {vB2}
        v_cndmask_b32 {vCA}, 0, 1.0, vcc
        v_cmp_eq_u32 vcc, 2, {vB2}
        v_mov_b32 {t[0]}, {f32(-1 / 1024)}
        v_cndmask_b32 {vCB}, 0, {t[0]}, vcc
        v_cmp_eq_u32 vcc, 3, {vB2}
        v_cndmask_b32 {vCC}, 0, 1.0, vcc
        v_lshlrev_b32 {vStW}, 3, {vB2}
        v_lshl_add_u32 {vStW}, {vW4}, 3, {vStW}
        v_lshrrev_b32 {t[0]}, 5, v0
        v_lshl_add_u32 {vStW}, {t[0]}, 2, {vStW}
        v_and_b32 {vStR}, 31, v0
        v_lshlrev_b32 {vStR}, 3, {vStR}
        v_mov_b32 {vOne}, 0x3f803f80
        s_lshr_b32 {T0}, {sW}, 2
        s_lshl_b32 {T1}, {T0}, 7
        v_xor_b32 {vGA0}, {T1}, {vTr}
        s_lshl_b32 {T1}, {T0}, 15
        s_add_u32 {T1}, {T1}, {slot(N_G)}
        v_add_u32 {vGA0}, {T1}, {vGA0}
        v_xor_b32 {vGA1}, 0x80, {vGA0}
        v_add_u32 {vFTr}, {slot(N_F)}, {vTr}''')
    assert LE == 0
    a(f'''s_lshl3_add_u32 {T0}, {sJJ}, {sW}
        s_lshl_b32 {sLeP}, {T0}, 8
        s_lshl_b32 {sGg}, {T0}, {lg(PG_) + 2}
        s_lshr_b32 {T0}, {sJJ}, 2
        s_lshl_b32 {T1}, {T0}, 5
        s_add_u32 {T1}, {T1}, {sKsE}
        s_lshl1_add_u32 {T1}, {T1}, {sW}
        s_lshl_b32 {sLeG}, {T1}, 7
        s_lshl3_add_u32 {T0}, {T0}, {sC}
        s_lshl2_add_u32 {T0}, {T0}, {sKsE}
        s_lshl1_add_u32 {T0}, {T0}, {sW}
        s_lshl_b32 {sGp}, {T0}, {lg(PG_) + 1}
        v_lshlrev_b32 {vFA}, 11, {vGrp}
        v_bfe_u32 {t[0]}, v0, 3, 1
        v_lshl_add_u32 {vFA}, {t[0]}, 10, {vFA}
        v_lshl_add_u32 {vFA}, {vFl}, 2, {vFA}
        v_lshl_add_u32 {vGA_}, {vB2}, {lg(PG_)}, {vN4}
        v_lshl_or_b32 {vGS}, {t[0]}, 30, {vGA_}''')
    a(f'''v_lshrrev_b32 {vHint}, 1, v0
        v_lshlrev_b32 {vHint}, 4, {vHint}
        v_lshl_add_u32 {vHint}, {vNq}, 2, {vHint}
        s_mov_b32 {sLoG}, {LX}
        v_min_u32 {vHint2}, 55, v0
        v_lshlrev_b32 {vHint2}, 4, {vHint2}
        v_lshl_add_u32 {vHint2}, {vNq}, 2, {vHint2}
        s_lshl1_add_u32 {sXp}, {sJJ}, {sW}
        s_lshl_b32 {sXp}, {sXp}, 4
        s_add_u32 {sXp}, {sXp}, {LG}''')
    if cfg.hint:
        a(f'buffer_load_dword {v(S + 13)}, {vHint}, {WL}, {sLoG} offen sc1')
    if cfg.pretouch & 2:
        a(f'buffer_load_dword {v(S + 13)}, {vXA}, {WS}, {sXg1} offen sc1')
        a(f'buffer_load_dword {v(S + 14)}, {vXA}, {WS}, {sXg1} offen offset:{4 * PX_} sc1')
    if cfg.pretouch & 4:
        a(f'buffer_load_dword {v(S + 15)}, {vGA_}, {WS}, {sGg} offen sc1')
    a.label('L_predone')
    stamp('pre_done')
    warm('WT')
    a(f's_add_u32 {sVe}, {sVe}, {32 - cfg.preat}')
    v_loop(sVe)
    if cfg.warm:
        a(';warm_begin WT')
    if cfg.sync:
        a(f's_add_u32 {T0}, s64, 4500\ns_or_b32 {T0}, {T0}, 0xfff')
        a.label('L_sync')
        a(f'''s_memrealtime s[62:63]
            s_waitcnt lgkmcnt(0)
            s_cmp_le_u32 s62, {T0}
            s_cbranch_scc1 L_sync
            s_mov_b32 s64, s62''')
    stamp('v_done')
    for r in range(4):
        a(f'v_mul_f32 {v(OA + r)}, {vFs}, {v(OA + r)}')
    publish4(OA, sLoP, vOpA)
    if cfg.h1 or cfg.h0:
        set_freed(N_G + 1)
    a('s_cmp_lt_u32 s2, 224\ns_cbranch_scc1 L_noo')
    if cfg.ackwait & 1:
        a('s_waitcnt vmcnt(0)')
    gather([ld4(KF + 4 * i, vL16, sLoG, 1024 * i) for i in range(4)])
    stamp('e3a')
    tree(KF, (8, 4))
    swap_reduce4(KF)
    publish16(v(KF), vOA_, sOoP)
    stamp('O_pub')
    if cfg.ackwait & 2:
        a('s_waitcnt vmcnt(0)')
    a('s_branch L_D')
    a.label('L_noo')
    if cfg.olate:
        wo_frags(N_G)
    if cfg.e3bat:
        wait_landed(cfg.e3bat)
    a.label('L_D')
    stamp('e3b_go')
    gemv128(7, ACT_D, vOA_, sOoG, S, sLdP, 'e3b', sleep=cfg.tsleep, pos=vActD, pipe=cfg.pipe)
    stamp('D_pub')
    a('s_cmp_lt_u32 s2, 224\ns_cbranch_scc1 L_E')
    a(f's_lshr_b32 {T0}, {sLoG}, 8\ns_add_u32 {T0}, {T0}, {LX}')
    if cfg.ackwait & 1:
        a('s_waitcnt vmcnt(0)')
    gather([ld4(KF, vSeg, sRg), ld4(KF + 4, vSeg2, sRg)])
    stamp('e4a')

    def hint_store():
        a('s_mov_b64 exec, 15')
        store_local(f'buffer_store_dword {vTagQ}, {vL4}, {WL}, {T0} offen')
        a('s_mov_b64 exec, -1')
    if cfg.hint & 1:
        hint_store()
    tree(KF, (4,))
    swap_reduce4(KF)
    dpp('v_add_f32', v(KF), 'row_ror:8')
    dpp('v_add_f32', v(KF), 'row_ror:4')
    a(f'v_fmac_f32 {vXr}, {vGa}, {v(KF)}')
    publish16(vXr, vXS, sXp)
    if cfg.hint & 2:
        hint_store()
    stamp('R_pub')
    a(f'v_and_b32 {vXr}, 0xffff0000, {vXr}')
    next_gen()
    gather([ld4(KF, vSeg, sRg), ld4(KF + 4, vXA, sRg)], light=cfg.rlight if cfg.rlight >= 0 else None)
    stamp('e5')
    for i in range(4):
        a(f'v_fmac_f32 {v(KF + i)}, {vMk}, {v(KF + 4 + i)}')
    swap_reduce4(KF)
    dpp('v_add_f32', v(KF), 'row_ror:8')
    dpp('v_add_f32', v(KF), 'row_ror:4')
    a(f'''v_fmac_f32 {vXr}, {vGb}, {v(KF)}
        v_cvt_pk_bf16_f32 {vXr}, {vXr}, {vXr}
        s_mov_b32 exec_lo, 0x000f000f
        s_mov_b32 exec_hi, 0x000f000f
        global_store_short {vOut}, {vXr}, {sp(pOUT)}''')
    stamp('out')
    a('s_branch L_fin')
    a.label('L_E')
    if cfg.h2:
        set_freed(N_G + 2)

    def gu_frags():
        a(f'''s_lshr_b32 {T0}, {sW}, 2
            s_lshl2_add_u32 {T0}, {T0}, {N_U}''')
        wait_landed(T0)
        tr_reads(vGA0, [8192 * j for j in range(4)], KF)
        tr_reads(vGA1, [8192 * j for j in range(4)], KF + 16)
    if not cfg.gulate:
        gu_frags()
    if cfg.e4bat:
        wait_landed(cfg.e4bat)
    if cfg.hint:
        if cfg.hint & 4:
            a(f's_cmp_lg_u32 {sW}, 0\ns_cbranch_scc1 L_nohint')
        gather([(f'buffer_load_dword {v(S)}, {vHint}, {WL}, {sLoG} offen sc1', S, False)], clean=False, sleep=cfg.hsleep)
        if cfg.hint & 4:
            a.label('L_nohint')
            csync(8)
    stamp('e4b_go')
    x0, x1 = S + 8, S + 9
    x4 = lambda r, off: (f'buffer_load_dwordx4 {v(r, 4)}, {vSeg2}, {WS}, {sXg0} offen offset:{off} sc1', r, False)
    gather([ld1(x0, vXA, sXg1), ld1(x1, vXA, sXg1, 4 * PX_), x4(S, 0), x4(S + 4, 16 * PX_)], clean=False,
           light=cfg.tsleep if cfg.xlight and not cfg.hint else None,
           after=(lambda: set_freed(N_G + 3)) if cfg.h3 and cfg.h3early else None)
    stamp('e4b')
    if cfg.h3 and not cfg.h3early:
        set_freed(N_G + 3)
    sm, sq = t[0], t[1]
    y0, y1, hi = v(x0), v(x1), t[2]
    a(f'''s_mov_b32 {T1}, 0x07060302
        v_and_b32 {y0}, 0xffff0000, {y0}
        v_and_b32 {y1}, 0xffff0000, {y1}
        v_perm_b32 {v(S)}, {v(S + 1)}, {v(S)}, {T1}
        v_mul_f32 {y0}, {y0}, {vU0}
        v_mul_f32 {y1}, {y1}, {vU1}
        v_perm_b32 {v(S + 2)}, {v(S + 3)}, {v(S + 2)}, {T1}
        v_cvt_pk_bf16_f32 {hi}, {y0}, {y1}
        v_perm_b32 {v(S + 4)}, {v(S + 5)}, {v(S + 4)}, {T1}
        v_perm_b32 {v(S + 6)}, {v(S + 7)}, {v(S + 6)}, {T1}
        ds_write_b16 {vEP0}, {hi} offset:{ACT_E}
        ds_write_b16_d16_hi {vEP0}, {hi} offset:{ACT_E + 8}
        v_dot2_f32_bf16 {sm}, {v(S)}, {vOne}, 0
        v_dot2_f32_bf16 {sq}, {v(S)}, {v(S)}, 0''')
    for i in (2, 4, 6):
        a(f'v_dot2_f32_bf16 {sm}, {v(S + i)}, {vOne}, {sm}\nv_dot2_f32_bf16 {sq}, {v(S + i)}, {v(S + i)}, {sq}')
    a(f'''v_lshlrev_b32 {t[3]}, 16, {hi}
        v_and_b32 {t[4]}, 0xffff0000, {hi}
        v_sub_f32 {y0}, {y0}, {t[3]}
        v_permlane32_swap_b32 {sm}, {sq}
        v_sub_f32 {y1}, {y1}, {t[4]}
        v_add_f32 {sm}, {sm}, {sq}
        v_cvt_pk_bf16_f32 {hi}, {y0}, {y1}
        v_mov_b32 {sq}, {sm}
        ds_write_b16 {vEP0}, {hi} offset:{ACT_E + 64}
        ds_write_b16_d16_hi {vEP0}, {hi} offset:{ACT_E + 64 + 8}
        v_permlane16_swap_b32 {sm}, {sq}
        v_add_f32 {sm}, {sm}, {sq}''')
    dpp('v_add_f32', sm, 'quad_perm:[1,0,3,2]')
    dpp('v_add_f32', sm, 'quad_perm:[2,3,0,1]')
    a(f'ds_write_b32 {vStW}, {sm} offset:{ST2}')
    if cfg.gulate:
        gu_frags()
    csync(9)
    stamp('E_cs1')
    a(f'ds_read_b64 v[8:9], {vStR} offset:{ST2}')
    for j in range(8):
        a(f'ds_read_b128 {v(S + 4 * j, 4)}, {vL16} offset:{ACT_E + 1024 * j}')
    fin = [f'v_add_f32_dpp {sm}, {sm}, {sm} row_ror:4 row_mask:0xf bank_mask:0xf\nv_add_f32_dpp {sq}, {sq}, {sq} row_ror:4 row_mask:0xf bank_mask:0xf',
           f'v_add_f32_dpp {sm}, {sm}, {sm} row_ror:8 row_mask:0xf bank_mask:0xf\nv_add_f32_dpp {sq}, {sq}, {sq} row_ror:8 row_mask:0xf bank_mask:0xf',
           f'v_mov_b32 {t[2]}, {sm}\nv_mov_b32 {t[3]}, {sq}',
           f'v_permlane16_swap_b32 {sm}, {t[2]}\nv_permlane16_swap_b32 {sq}, {t[3]}\nv_add_f32 {sm}, {sm}, {t[2]}\nv_add_f32 {sq}, {sq}, {t[3]}',
           f'v_mul_f32 {t[2]}, {f32(1 / 1024)}, {sm}\nv_mul_f32 {sq}, {f32(1 / 1024)}, {sq}\nv_fma_f32 {sq}, -{t[2]}, {t[2]}, {sq}',
           f'v_max_f32 {sq}, 0, {sq}\nv_add_f32 {sq}, {f32(1e-5)}, {sq}\nv_rsq_f32 {sq}, {sq}',
           f'v_fma_f32 {sm}, {sm}, {vCB}, {vCA}\nv_fma_f32 {sm}, {sm}, {sq}, {vCC}',
           f'v_add_u32 {vTagP}, {TAGK}, {vTagP}\nv_add_u32 {vTagQ}, {TAGK}, {vTagQ}']
    for j in range(8):
        a(f's_waitcnt lgkmcnt({7 - j})')
        mfma(OA, KF + 4 * j, S + 4 * j, j == 0)
        a(fin[j])
    for r in range(4):
        a(f'v_mul_f32 {v(OA + r)}, {sm}, {v(OA + r)}')
    for ror in (4, 8):
        for r in range(4):
            dpp('v_add_f32', v(OA + r), f'row_ror:{ror}')
    publish4(OA, sLeP)
    stamp('E_pub')
    a(f's_cmp_ge_u32 {sW}, 2\ns_cbranch_scc1 L_nog')
    if cfg.ackwait & 1:
        a('s_waitcnt vmcnt(0)')
    stamp('E_ack')
    gather([ld4(KF, vFA, sLeG)])
    stamp('e4c')
    if cfg.ghint:
        a('s_mov_b64 exec, 15')
        store_local(f'buffer_store_dword {vTagQ}, {vL4}, {WL}, {sXp} offen')
        a('s_mov_b64 exec, -1')
    swap_reduce4(KF)
    x, u = v(KF), v(KF + 1)
    c1 = -2.0 * 0.7978845608028654 * LOG2E
    a(f'''v_mul_f32 {t[1]}, {x}, {x}
        v_mov_b32 {t[2]}, {f32(c1)}
        v_fmac_f32 {t[2]}, {f32(c1 * 0.044715)}, {t[1]}
        v_mul_f32_dpp {u}, {x}, {x} row_ror:8 row_mask:0xf bank_mask:0xf
        v_mul_f32 {t[2]}, {t[2]}, {x}
        v_exp_f32 {t[2]}, {t[2]}
        v_add_f32 {t[2]}, 1.0, {t[2]}
        v_rcp_f32 {t[2]}, {t[2]}
        v_mul_f32 {x}, {u}, {t[2]}''')
    publish16(x, vGS, sGp)
    stamp('G_pub')
    if cfg.ackwait & 4 and not cfg.ghint:
        a('s_waitcnt vmcnt(0)')
    a.label('L_nog')
    wait_landed(N_END)
    tr_reads(vFTr, [8192 * j for j in range(4)], WF)
    if cfg.ghint:
        a(f's_cmp_lg_u32 {sW}, 7\ns_cbranch_scc1 L_nogh')
        gather([(f'buffer_load_dword {v(S)}, {vHint2}, {WL}, {sLoG} offen offset:{LG - LX} sc1', S, False)], clean=False)
        a.label('L_nogh')
    if cfg.ackwait & 4:
        csync(11)
    stamp('e4d_go')
    gemv128(12, ACT_F, vGA_, sGg, S, sLdP, 'e4d')
    stamp('F_pub')
    if cfg.warm:
        a(';warm_end WT')
    a.label('L_fin')
    if cfg.probe:
        i = stamp_names.index(cfg.probe)
        if cfg.probewg >= 0:
            a(f's_cmp_lg_u32 s2, {cfg.probewg}\ns_cbranch_scc1 L_noprobe')
        a(f'''s_sub_u32 {T0}, s{64 + i}, s64
            s_mul_i32 {T0}, {T0}, 10
            s_add_u32 {T0}, {T0}, 10000''')
        a.label('L_probe')
        a(f'''s_memrealtime s[62:63]
            s_waitcnt lgkmcnt(0)
            s_sub_u32 {T1}, s62, s64
            s_cmp_lt_u32 {T1}, {T0}
            s_cbranch_scc1 L_probe''')
        a.label('L_noprobe')
    if DBG:
        a(f's_cmp_lg_u32 {sW}, 0\ns_cbranch_scc1 L_end\ns_mov_b32 s95, {sLoc}\ns_lshl_b32 {T1}, s2, 1')
        dump_stamps(T1)
    a.label('L_end')
    a('s_endpgm')
    for o in ool:
        a(o)
    a.label('L_last')
    a('s_endpgm')

    body = a.finish(step=cfg.warm or 64)
    print('code bytes', a.code_bytes, a.npads, file=sys.stderr)
    hdr = open('cdna_kernels/' + NAME + '.s.ref').read().split('; Override launch')[0]
    txt = hdr + f'''; Persistent fused kernel: one workgroup per CU: 1 LDS-DMA loader wave, 8 compute waves, 1 control wave.
; @launch grid=(256,1,1) block=(640,1,1) lds={LDS_BYTES}
.amdgcn_target "amdgcn-amd-amdhsa--gfx950"
.text
.globl {NAME}_kernel
.p2align 8
.type {NAME}_kernel,@function
{NAME}_kernel:
{body}.section .rodata,"a"
.p2align 6
.amdhsa_kernel {NAME}_kernel
  .amdhsa_next_free_vgpr 160
  .amdhsa_next_free_sgpr 102
  .amdhsa_accum_offset 160
  .amdhsa_group_segment_fixed_size 0
  .amdhsa_kernarg_size 112
  .amdhsa_user_sgpr_count 2
  .amdhsa_user_sgpr_kernarg_segment_ptr 1
  .amdhsa_system_sgpr_workgroup_id_x 1
.end_amdhsa_kernel
'''
    return txt, dict(consumer=list(stamp_names), loader=loader_names)


def parser():
    p = argparse.ArgumentParser()
    p.add_argument('-o', dest='out', default='out.s')
    for k, d in dict(debug=0, wmain=22, wtail=30, wslow=14, wfast=30, fsleep=8, lsleep=2, tsleep=0, e1at=8, e1lead=2, e2at=24, e2lead=0,
                     preat=20, nocomm=0, trace=0, ackwait=7, spec=0, e4bat=0, sync=0, ctl=1, ctl0=20, ctlstep=4, ctllo=4,
                     ctlhi=28, mode0a=0, mode0n=1, hello=24, preread=0, pretouch=1, xlight=1, olate=1, h0=1, rbias=5, h3early=1, ghint=1, nocons=0, noswz=0, wsleep=0, first=8, warm=0, ctlend=74, early=1, h1=0, h2=84, h3=90, gulate=0, pipe=0, hsleep=0, hint=5, l2code=2, e3bat=0, rlight=-1, po=PO, px=PX, pg=PG,
                     probewg=40, timeout=1 << 20).items():
        p.add_argument('--' + k, type=int, default=d)
    p.add_argument('--probe', default='')
    p.add_argument('--only', default='')
    p.add_argument('--prent', default='')
    return p


if __name__ == '__main__':
    cfg = parser().parse_args()
    txt, names = build(cfg)
    open(cfg.out, 'w').write(txt)
    import json
    json.dump(names, open(cfg.out + '.json', 'w'))
```
